```python
import torch

def _softmax(x, axis=-1):
    return torch.softmax(x, dim=axis)
def _gelu(x):
    return torch.nn.functional.gelu(x, approximate="tanh")
def _silu(x):
    return torch.nn.functional.silu(x)
def _sigmoid(x):
    return torch.sigmoid(x)
def _layernorm(x, axis=-1, eps=1e-5):
    m = x.mean(dim=axis, keepdim=True)
    v = x.var(dim=axis, keepdim=True, unbiased=False)
    return (x - m) / torch.sqrt(v + eps)
def _scatter_add(tgt, idx, src, axis=0):
    return tgt.clone().index_add_(axis, idx, src)
def _segment_sum(src, seg, n):
    out = torch.zeros((n,) + src.shape[1:], dtype=src.dtype)
    return out.index_add_(0, seg, src)
def _pad(x, pw):
    flat = tuple(v for pair in reversed(pw) for v in pair)
    return torch.nn.functional.pad(x, flat)

kernel_name = 'recurrent_scan__linear_kernel_hedgehog__moe_arch_mod__prompt'

def setup_inputs():

    _w = (lambda a: (lambda t: t.to(torch.bfloat16) if t.is_floating_point() else t)(torch.as_tensor(a)))
    def _A_setup():
        B, S, D, H = 1, 2048, 1024, 32
        Dh = D // H
        return {
            "x": _w((lambda *s: torch.randn(*s, dtype=torch.bfloat16) * 0.05)(B, S, D)),
            "wqkv": _w((lambda *s: torch.randn(*s, dtype=torch.bfloat16) * 0.2)(D, 3 * D)),
            "w_phi": _w((lambda *s: torch.randn(*s, dtype=torch.bfloat16) * 0.2)(H, Dh, Dh) * (Dh ** -0.5)),
            "wo": _w((lambda *s: torch.randn(*s, dtype=torch.bfloat16) * 0.05)(D, D)),
        }
    _A_in = _A_setup()

    def _B_setup():
        B, S, D, F, C = 1, 2048, 1024, 3584, 1
        return {
            "x": _w((lambda *s: torch.randn(*s, dtype=torch.bfloat16) * 0.05)(B, S, D)),
            "w_r": _w((lambda *s: torch.randn(*s, dtype=torch.bfloat16) * 0.05)(D)),
            "w_gate": _w((lambda *s: torch.randn(*s, dtype=torch.bfloat16) * 0.05)(D, F)),
            "w_up": _w((lambda *s: torch.randn(*s, dtype=torch.bfloat16) * 0.05)(D, F)),
            "w_down": _w((lambda *s: torch.randn(*s, dtype=torch.bfloat16) * 0.05)(F, D)),
        }
    _B_in = _B_setup()

    return {
        "A_x": _A_in["x"],
        "A_wqkv": _A_in["wqkv"],
        "A_w_phi": _A_in["w_phi"],
        "A_wo": _A_in["wo"],
        "B_x": _B_in["x"],
        "B_w_r": _B_in["w_r"],
        "B_w_gate": _B_in["w_gate"],
        "B_w_up": _B_in["w_up"],
        "B_w_down": _B_in["w_down"],
    }

def reference(A_x, A_wqkv, A_w_phi, A_wo, B_x, B_w_r, B_w_gate, B_w_up, B_w_down):
    def _A_ref(x, wqkv, w_phi, wo):
        B, S, D = x.shape
        H = 32; Dh = D // H
        qkv = (lambda x, *d: x.permute(*d))((x @ wqkv).reshape(B, S, 3, H, Dh), 2, 0, 3, 1, 4)
        q, k, v = qkv[0], qkv[1], qkv[2]
        pq = torch.einsum("bhsd,hdf->bhsf", q, w_phi)
        pk = torch.einsum("bhsd,hdf->bhsf", k, w_phi)
        phi_q = torch.concatenate([_softmax(pq, axis=-1), _softmax(-pq, axis=-1)], axis=-1)
        phi_k = torch.concatenate([_softmax(pk, axis=-1), _softmax(-pk, axis=-1)], axis=-1)
        kv = torch.einsum("bhsf,bhsd->bhfd", phi_k, v)
        z  = torch.einsum("bhsf->bhf", phi_k)
        num = torch.einsum("bhqf,bhfd->bhqd", phi_q, kv)
        den = torch.einsum("bhqf,bhf->bhq", phi_q, z)[..., None] + 1e-6
        o = num / den
        return (lambda x, *d: x.permute(*d))(o, 0, 2, 1, 3).reshape(B, S, D) @ wo

    def _B_ref(x, w_r, w_gate, w_up, w_down):
        B, S, D = x.shape
        C = 1
        r = x @ w_r
        idx = torch.argsort(-r, axis=-1)[:, :C]
        idx_e = (lambda x, n, axis: torch.repeat_interleave(x, n, dim=axis))(idx.reshape(B, C, 1), D, axis=2)
        x_sel = (lambda x, i, axis: torch.take_along_dim(x, i, dim=axis))(x, idx_e, axis=1)
        g = _silu(x_sel @ w_gate)
        u = x_sel @ w_up
        y = (g * u) @ w_down
        r_sel = _sigmoid((lambda x, i, axis: torch.take_along_dim(x, i, dim=axis))(r, idx, axis=1))
        y = y * r_sel.reshape(B, C, 1)
        b_off = (torch.arange(B) * S).reshape(B, 1)
        flat_idx = (idx + b_off).reshape(B * C)
        zero = (x * 0.0).reshape(B * S, D)
        upd = _scatter_add(zero, flat_idx, y.reshape(B * C, D), axis=0)
        return x + upd.reshape(B, S, D)

    x = A_x
    xn = _layernorm(x, axis=-1)
    s = _A_ref(xn, A_wqkv, A_w_phi, A_wo)
    g = _silu(_B_ref(xn, B_w_r, B_w_gate, B_w_up, B_w_down))
    return x + s * g
```

```python
import re

TRANS = ("v_exp_f32","v_log_f32","v_rcp_f32","v_rsq_f32","v_sqrt_f32","v_sin_f32","v_cos_f32","v_rcp_iflag_f32")
NO_DST_S = ("s_cmp","s_waitcnt","s_barrier","s_nop","s_branch","s_cbranch","s_endpgm","s_setprio","s_sleep","s_bitcmp")

def regs_of(tok):
    t = tok.strip()
    t = t.lstrip('-').strip('|')
    if t.startswith('abs(') or t.startswith('neg('): t = t[4:-1]
    m = re.fullmatch(r'([vsa])(\d+)', t)
    if m: return {(m.group(1), int(m.group(2)))}
    m = re.fullmatch(r'([vsa])\[(\d+):(\d+)\]', t)
    if m: return {(m.group(1), i) for i in range(int(m.group(2)), int(m.group(3))+1)}
    if t in ('vcc','vcc_lo','vcc_hi'): return {('vcc',0)}
    if t in ('exec','exec_lo','exec_hi'): return {('exec',0)}
    if t == 'm0': return {('m0',0)}
    return set()

def split_ops(s):
    out=[]; depth=0; cur=''
    for ch in s:
        if ch in '[(': depth+=1
        if ch in '])': depth-=1
        if ch==',' and depth==0: out.append(cur); cur=''
        else: cur+=ch
    if cur.strip(): out.append(cur)
    return [o.strip() for o in out]

class Ins:
    def __init__(self, text):
        self.text = text
        body = text.split(';')[0].strip()
        parts = body.split(None,1)
        self.mn = parts[0]
        rest = parts[1] if len(parts)>1 else ''
        ops = split_ops(rest)
        self.mods = ''
        toks=[]
        for o in ops:
            p = o.split(None,1)
            toks.append(p[0])
            if len(p)>1: self.mods += ' '+p[1]
        self.ops = toks
        mn = self.mn
        self.kind='other'; self.w=set(); self.r=set(); self.srcc=set(); self.srcab=set()
        R = [regs_of(t) for t in toks]
        if mn.startswith('v_mfma'):
            self.kind='mfma'; self.w=R[0]; self.srcab=R[1]|R[2]; self.srcc=R[3]; self.r=self.srcab|self.srcc
            self.passes = 8 if '32x32x16' in mn else 4 if '16x16x32' in mn else 16
        elif mn.startswith('v_'):
            self.kind='valu'
            if (mn.startswith('v_permlane') and 'swap' in mn) or mn.startswith('v_swap'):
                self.w=R[0]|R[1]; self.r=R[0]|R[1]
            elif mn.startswith('v_cmp'):
                self.w=R[0]; self.r=set().union(*R[1:])
            elif '_co_' in mn:
                self.w=R[0]|R[1]; self.r=set().union(*R[2:])
            else:
                self.w=R[0]; self.r=set().union(*R[1:]) if len(R)>1 else set()
                if mn.startswith(('v_fmac','v_pk_fmac','v_dot2c','v_fmamk','v_fmaak')): self.r|=R[0]
                if mn.startswith('v_cndmask') and len(R)==3: self.r|={('vcc',0)}
            self.trans = mn.replace('_e32','').replace('_e64','') in TRANS
            self.dpp = ('row_' in self.mods) or ('quad_perm' in self.mods) or ('wave_' in self.mods)
            self.permlane = mn.startswith('v_permlane')
            self.readlane = mn.startswith(('v_readlane','v_readfirstlane'))
            if self.dpp: self.r |= R[0]
        elif mn.startswith('s_'):
            self.kind='salu'
            if mn.startswith('s_load') or mn.startswith('s_buffer_load'):
                self.kind='smem'; self.w=R[0]; self.r=set().union(*R[1:])
            elif mn.startswith(NO_DST_S):
                self.r=set().union(*R) if R else set()
            else:
                self.w=R[0]; self.r=set().union(*R[1:]) if len(R)>1 else set()
                if 'saveexec' in mn: self.w|={('exec',0)}
        elif mn.startswith(('buffer_','global_')):
            self.kind='vmem'
            self.lds = bool(re.search(r'\blds\b', self.mods)) or 'load_lds' in mn
            if 'store' in mn or ('atomic' in mn):
                self.r=set().union(*R)
                self.store=True
                if mn.startswith('buffer_'): self.data=R[0]
                else: self.data=R[1]
                if 'atomic' in mn and 'sc0' in self.mods: self.w = R[0]
                self.wide = ('x3' in mn or 'x4' in mn)
            else:
                self.store=False
                if self.lds: self.r=set().union(*R)|{('m0',0)}
                else: self.w=R[0]; self.r=set().union(*R[1:])
        elif mn.startswith('ds_'):
            self.kind='ds'
            if mn.startswith(('ds_read','ds_bpermute','ds_permute','ds_swizzle')) or '_rtn' in mn:
                self.w=R[0]; self.r=set().union(*R[1:])
            else:
                self.r=set().union(*R)

def need(p, c):
    n=0
    vw = {x for x in p.w if x[0] in 'va'}
    sw = {x for x in p.w if x[0] in ('s','vcc')}
    if p.kind=='valu':
        if c.kind=='mfma' and vw & c.r: n=max(n,2)
        if c.kind=='valu':
            if getattr(p,'trans',False) and not c.trans and (vw & (c.r|c.w)): n=max(n,1)
            if (c.dpp or c.permlane) and vw & c.r: n=max(n,2)
            if c.readlane and vw & c.r: n=max(n,1)
            if sw & c.r: n=max(n, 4 if c.readlane else 2)
        if c.kind=='vmem' and sw & c.r: n=max(n,5)
        if ('exec',0) in p.w: n=max(n,5)
        if c.kind in('salu','smem') and sw & c.r: n=max(n,1)
    if p.kind=='valu' and p.mn.startswith('v_dot') and (vw & (c.r|c.w)):
        same_c = (c.mn==p.mn and len(c.ops)==4 and regs_of(c.ops[3])==vw and not (vw & (regs_of(c.ops[1])|regs_of(c.ops[2]))))
        if not same_c: n=max(n,3)
    if p.kind=='mfma':
        P={4:(8,6,3),8:(12,10,7),16:(20,18,15)}[p.passes]
        if c.kind=='mfma':
            if p.w & c.srcab: n=max(n,P[0])
            if p.w & c.srcc and not (p.w==c.srcc and p.passes==c.passes): n=max(n,P[1])
            if p.w & c.w and not (p.w==c.srcc): n=max(n,P[1])
        else:
            if p.w & (c.r|c.w): n=max(n,P[0])
            if c.kind=='valu' and p.srcc & c.w: n=max(n,P[2])
    if p.kind=='salu' and ('m0',0) in p.w and ('m0',0) in c.r: n=max(n,1)
    if p.kind=='vmem' and getattr(p,'store',False) and p.wide and p.data & c.w: n=max(n,2)
    if p.kind=='ds' and p.mn.startswith('ds_write') and ('128' in p.mn or '96' in p.mn) and c.kind=='valu' and (p.r & c.w): n=max(n,2)
    return n

class Asm:
    def __init__(self):
        self.lines=[]
        self.hist=[]
        self.pos=0
        self.nops=0
    def raw(self, text):
        self.lines.append(text)
    def label(self, name):
        self.lines.append(name+':')
    def comment(self, t): self.lines.append('    ; '+t)
    def __call__(self, text):
        for t in text.strip().split('\n'):
            t=t.strip()
            if not t: continue
            if t.startswith(';'): self.lines.append('    '+t); continue
            if t.endswith(':') and ' ' not in t: self.label(t[:-1]); continue
            self.emit(t)
    def emit(self, text):
        ins=Ins(text)
        req=0
        for (p,pp) in self.hist:
            n=need(p,ins)
            if n:
                have=self.pos-pp-1
                req=max(req,n-have)
        while req>0:
            k=min(req,16)
            self.lines.append(f'    s_nop {k-1}')
            self.pos+=k; req-=k; self.nops+=1
        self.lines.append('    '+text)
        if ins.mn=='s_nop':
            self.pos+=int(ins.ops[0],0)+1
        else:
            self.hist.append((ins,self.pos)); self.pos+=1
        self.hist=[(p,pp) for (p,pp) in self.hist if self.pos-pp<24]
    def pad(self, n=20):
        while n>0:
            k=min(n,16); self.emit(f's_nop {k-1}'); n-=k
    def text(self): return '\n'.join(self.lines)+'\n'

def kernel_header(a, name):
    a.raw(f'.globl {name}\n.p2align 8\n.type {name},@function\n{name}:')
    a.hist=[]
def kernel_desc(name, vgpr, sgpr=102, accum=None):
    accum = accum or ((vgpr+3)//4*4)
    return f'''.amdhsa_kernel {name}
  .amdhsa_next_free_vgpr {vgpr}
  .amdhsa_next_free_sgpr {sgpr}
  .amdhsa_accum_offset {accum}
  .amdhsa_group_segment_fixed_size 0
  .amdhsa_kernarg_size 96
  .amdhsa_user_sgpr_count 2
  .amdhsa_user_sgpr_kernarg_segment_ptr 1
  .amdhsa_system_sgpr_workgroup_id_x 1
.end_amdhsa_kernel
'''
```

```python
import sys, os
from asmgen import Asm, kernel_header, kernel_desc

NAME = "recurrent_scan__linear_kernel_hedgehog__moe_arch_mod__prompt"
OPT = dict(kv.split('=') if '=' in kv else (kv, '1') for kv in os.environ.get('OPT', '').split(',') if kv)
STAMPS = int(os.environ.get("STAMPS", "0"))
def opt(k, d): return type(d)(OPT.get(k, d))

WS_STAT  = 0x0000000
WS_KEY   = 0x0010000
WS_KFLAG = 0x0020000
WS_OFLAG = 0x0030000
WS_YFLAG = 0x0040000
WS_CS    = 0x0100000
WS_KVP   = 0x0200000
KVS      = 4352
WS_GU    = 0x0600000
WS_YP    = 0x0800000
WS_O     = 0x0C00000
WS_DBG   = 0x3000000
WS_SIZE  = 0x10000000
LA, LW, LM = 0, 65536, 131072
L_PHI = LM
L_ST1 = LM+4096
L_ST2 = LM+5632
L_CS  = LM+7168
L_PUB = LM+7936
L_KEY = LM+8000
L_FLG = LM+8064
L_YS  = LM+8192
L_SROW= LM+9216
L_SCR = LM+9728
L_QS  = L_SCR
L_CSP = L_SCR+8192
L_KVF = L_SCR
L_ZB  = L_SCR+8192
RS_ = 136
LDS_BYTES = 163840
DPPM = "row_mask:0xf bank_mask:0xf"
LOG2E = 0x3fb8aa3b
SPIN = 200000
P_X, P_W, P_PHI, P_WO, P_BX, P_WR, P_WG, P_WU, P_WD, P_OUT, P_DBG, P_WS = [40+2*i for i in range(12)]
SX, SW, SWS, SA, SB, SC = 4, 8, 12, 16, 20, 24
sMT, sHP, sWV, sROT, sTH, sHH, sMT2, sNB, sNON, sKEY, sIDX, sOWN, sSTAT = 36, 37, 38, 39, 28, 29, 30, 31, 32, 33, 34, 35, 64

def srd(a, d, p, size):
    a(f"s_mov_b32 s{d}, s{p}\ns_mov_b32 s{d+1}, s{p+1}\ns_mov_b32 s{d+2}, {size}\ns_mov_b32 s{d+3}, 0x00020000")
def S(d): return f"s[{d}:{d+3}]"
def V(b, n=4): return f"v[{b}:{b+n-1}]"
def rne(a, dst, src):
    a(f"v_cvt_pk_bf16_f32 v{dst}, v{src}, v{src}\nv_lshlrev_b32 v{dst}, 16, v{dst}")
def mfma(a, d, A, B, c=None):
    a(f"v_mfma_f32_16x16x32_bf16 {V(d)}, {V(A)}, {V(B)}, {'0' if c=='0' else V(d if c is None else c)}")
def stamp(a, i):
    if STAMPS: a(f"s_memrealtime s[98:99]\ns_waitcnt lgkmcnt(0)\nv_writelane_b32 v255, s98, {i}")
def dump(a, woff):
    if not STAMPS: return
    a("s_waitcnt vmcnt(0)"); stamp(a, 62)
    a(f"v_writelane_b32 v255, s96, 63\nv_lshlrev_b32 v254, 2, v1\ns_lshl_b32 s98, s2, 3\ns_add_u32 s98, s98, s{sWV}\ns_add_u32 s98, s98, {woff}\ns_lshl_b32 s98, s98, 8\ns_add_u32 s98, s98, {WS_DBG}")
    a(f"buffer_store_dword v255, v254, {S(SWS)}, s98 offen")

class VM:
    def __init__(self, a): self.a = a; self.q = []
    def issue(self, tag, n=1): self.q += [tag]*n
    def wait(self, *tags):
        idx = max([i for i, t in enumerate(self.q) if t in tags], default=-1)
        if idx < 0: return
        n = len(self.q)-1-idx
        self.a(f"s_waitcnt vmcnt({min(n,63)})")
        self.q = self.q[idx+1:]

def pk(a, op, d, srcs, neg=None):
    ops = []; lo = []; hi = []
    for s_ in srcs:
        if isinstance(s_, tuple):
            r = s_[1]; assert r % 2 == 0
            ops.append(V(r & ~1, 2)); lo.append(r & 1); hi.append(r & 1)
        else:
            assert s_ % 2 == 0
            ops.append(V(s_, 2)); lo.append(0); hi.append(1)
    m = ""
    if any(lo): m += f" op_sel:[{','.join(map(str,lo))}]"
    if not all(hi): m += f" op_sel_hi:[{','.join(map(str,hi))}]"
    if neg: m += f" neg_lo:[{','.join(map(str,neg))}] neg_hi:[{','.join(map(str,neg))}]"
    a(f"{op} {V(d,2)}, {', '.join(ops)}{m}")

def treduce(a, sets, ops):
    for s_ in sets: a(f"v_permlane32_swap_b32 v{s_[0]}, v{s_[2]}\nv_permlane32_swap_b32 v{s_[1]}, v{s_[3]}")
    for s_, op in zip(sets, ops): a(f"{op} v{s_[0]}, v{s_[0]}, v{s_[2]}\n{op} v{s_[1]}, v{s_[1]}, v{s_[3]}")
    for s_ in sets: a(f"v_permlane16_swap_b32 v{s_[0]}, v{s_[1]}")
    for s_, op in zip(sets, ops): a(f"{op} v{s_[0]}, v{s_[0]}, v{s_[1]}")
def tbcast(a, sets):
    for s_ in sets: a(f"v_mov_b32 v{s_[1]}, v{s_[0]}")
    for s_ in sets: a(f"v_permlane16_swap_b32 v{s_[0]}, v{s_[1]}")
    for s_ in sets: a(f"v_mov_b32 v{s_[2]}, v{s_[0]}\nv_mov_b32 v{s_[3]}, v{s_[1]}")
    for s_ in sets: a(f"v_permlane32_swap_b32 v{s_[0]}, v{s_[2]}\nv_permlane32_swap_b32 v{s_[1]}, v{s_[3]}")

def features(a, B, PHI, P, E, T, vC, vCc):
    for tt in range(4):
        for ft in range(2): mfma(a, P+8*tt+4*ft, PHI+4*ft, B+4*tt, '0')
    MX = [T+2*i for i in range(4)]; MN = [T+8+2*i for i in range(4)]
    for tt in range(4):
        p = P+8*tt
        a(f"v_max3_f32 v{MX[tt]}, v{p}, v{p+1}, v{p+2}\nv_min3_f32 v{MN[tt]}, v{p}, v{p+1}, v{p+2}")
        for i in (3, 5): a(f"v_max3_f32 v{MX[tt]}, v{MX[tt]}, v{p+i}, v{p+i+1}\nv_min3_f32 v{MN[tt]}, v{MN[tt]}, v{p+i}, v{p+i+1}")
        a(f"v_max_f32 v{MX[tt]}, v{MX[tt]}, v{p+7}\nv_min_f32 v{MN[tt]}, v{MN[tt]}, v{p+7}")
    treduce(a, [MX, MN], ["v_max_f32", "v_min_f32"])
    a(f"v_mul_f32 v{MX[0]}, v{MX[0]}, v{vCc}\nv_mul_f32 v{MN[0]}, v{MN[0]}, v{vCc}")
    tbcast(a, [MX, MN])
    for tt in range(4):
        for i in range(0, 8, 2):
            pk(a, "v_pk_fma_f32", E+16*tt+i, [P+8*tt+i, ('b', vC+2*tt), ('b', MX[tt])], [0, 0, 1])
            pk(a, "v_pk_fma_f32", E+16*tt+8+i, [P+8*tt+i, ('b', vC+2*tt), ('b', MN[tt])], [1, 0, 0])
        for i in range(16): a(f"v_exp_f32 v{E+16*tt+i}, v{E+16*tt+i}")
    for tt in range(4):
        for sg in range(2):
            e = E+16*tt+8*sg; t = P+8*tt+4*sg
            pk(a, "v_pk_add_f32", t, [e, e+2]); pk(a, "v_pk_add_f32", t+2, [e+4, e+6])
    for tt in range(4):
        for sg in range(2):
            t = P+8*tt+4*sg; pk(a, "v_pk_add_f32", t, [t, t+2])
    for tt in range(4):
        for sg in range(2):
            t = P+8*tt+4*sg; a(f"v_add_f32 v{T+8*sg+2*tt}, v{t}, v{t+1}")
    treduce(a, [MX, MN], ["v_add_f32", "v_add_f32"])

def kernel(a, kname):
    kernel_header(a, kname)
    if STAMPS: a("s_memrealtime s[96:97]")
    a("s_cmp_ge_u32 s2, 256\ns_cbranch_scc1 L_done")
    a("s_load_dwordx16 s[40:55], s[0:1], 0\ns_load_dwordx8 s[56:63], s[0:1], 64")
    a("v_and_b32 v1, 63, v0\nv_lshrrev_b32 v2, 6, v0")
    a(f"v_readfirstlane_b32 s{sWV}, v2")
    a(f"s_and_b32 s65, s2, 1\ns_bfe_u32 s66, s2, 0x30003\ns_bfe_u32 s67, s2, 0x20001\ns_lshl_b32 s67, s67, 2")
    a(f"s_lshl_b32 s{sMT}, s65, 3\ns_add_u32 s{sMT}, s{sMT}, s66\ns_lshr_b32 s3, s2, 6\ns_add_u32 s{sHP}, s67, s3")
    rot = opt('rot', 'mt')
    if rot == 'mt': a(f"s_lshl_b32 s{sROT}, s66, 1\ns_add_u32 s{sROT}, s{sROT}, s65\ns_add_u32 s{sROT}, s{sROT}, s67\ns_and_b32 s{sROT}, s{sROT}, 15")
    elif rot == 'mt0': a(f"s_lshl_b32 s{sROT}, s66, 1\ns_add_u32 s{sROT}, s{sROT}, s65")
    if STAMPS: a("v_mov_b32 v255, 0")
    def ids2():
        m2 = opt('map2', 2)
        if m2 == 2: a(f"s_and_b32 s{sMT2}, s2, 7\ns_lshl_b32 s{sMT2}, s{sMT2}, 1\ns_bfe_u32 s3, s2, 0x10003\ns_add_u32 s{sMT2}, s{sMT2}, s3\ns_lshr_b32 s{sNB}, s2, 4")
        elif m2 == 4: a(f"s_and_b32 s{sMT2}, s2, 3\ns_lshl_b32 s{sMT2}, s{sMT2}, 2\ns_bfe_u32 s3, s2, 0x20003\ns_add_u32 s{sMT2}, s{sMT2}, s3\ns_bfe_u32 s{sNB}, s2, 0x10002\ns_lshl_b32 s{sNB}, s{sNB}, 3\ns_lshr_b32 s3, s2, 5\ns_add_u32 s{sNB}, s{sNB}, s3")
        else: a(f"s_mov_b32 s{sMT2}, s{sMT}\ns_mov_b32 s{sNB}, s{sHP}")
    a(f"s_cmp_lt_u32 s{sWV}, 4\ns_cbranch_scc1 L_g1")
    g2(a, ids2)
    a("L_done:\ns_endpgm")
    a("L_g1:")
    g1(a, ids2, kname)
    a("s_endpgm")

def spin_check(a, lbl, bad, refetch, sleep=2):
    a(f"v_cmp_ne_u32 vcc, 0, v{bad}\ns_cmp_eq_u64 vcc, 0\ns_cbranch_scc1 {lbl}ok")
    a(f"s_add_u32 s70, s70, 1\ns_cmp_ge_u32 s70, {SPIN}\ns_cbranch_scc1 {lbl}ok\ns_sleep {sleep}")
    refetch()
    a(f"s_waitcnt vmcnt(0)\ns_branch {lbl}\n{lbl}ok:")

def g2(a, ids2):
    vm = VM(a)
    AM = opt('am', ''); WM = opt('wm', 'nt')
    a(f"s_sub_u32 s{sWV}, s{sWV}, 4")
    lw = sWV
    vA, vW, vQ = 8, 12, 16
    sLA, sLW, sAo, sWo, sQo = 72, 73, 74, 75, 76
    a(f"s_lshl_b32 s3, s{lw}, 4\nv_lshrrev_b32 v7, 3, v1\nv_add_u32 v3, s3, v7\nv_mul_u32_u24 v3, 6144, v3\ns_lshl_b32 s3, s{sHP}, 7\nv_add_u32 v3, s3, v3")
    a("v_and_b32 v6, 7, v1\nv_bfe_u32 v5, v1, 4, 1\nv_lshlrev_b32 v5, 1, v5\nv_xor_b32 v5, v6, v5")
    a(f"v_lshl_add_u32 v{vQ}, v5, 4, v3\nv_xor_b32 v5, 4, v5\nv_lshl_add_u32 v5, v5, 4, v3\nv_add_u32 v{vQ+1}, {8*6144-1024}, v5")
    a(f"v_add_u32 v{vW}, 2048, v{vQ}\nv_add_u32 v{vW+1}, 2048, v{vQ+1}\nv_add_u32 v{vW+2}, 4096, v{vQ}\nv_add_u32 v{vW+3}, 4096, v{vQ+1}")
    a(f"s_lshl_b32 s3, s{sMT}, 7\ns_lshl_b32 s65, s{lw}, 5\ns_add_u32 s3, s3, s65\nv_add_u32 v3, s3, v7\nv_lshlrev_b32 v3, 11, v3")
    a("v_lshrrev_b32 v5, 4, v1\nv_xor_b32 v6, v6, v5\nv_xor_b32 v5, 4, v6")
    a(f"v_lshl_add_u32 v{vA}, v6, 4, v3\nv_lshl_add_u32 v5, v5, 4, v3")
    a(f"v_add_u32 v{vA+1}, {16384-1024}, v5\nv_add_u32 v{vA+2}, {2*16384-2048}, v{vA}\nv_add_u32 v{vA+3}, {3*16384-3072}, v5")
    a(f"s_lshl_b32 s{sLA}, s{lw}, 12\ns_lshl_b32 s{sLW}, s{lw}, 11\ns_lshl_b32 s{sAo}, s{sROT}, 7\ns_mul_i32 s{sWo}, s{sROT}, 393216\ns_mov_b32 s{sQo}, s{sWo}")
    a("s_waitcnt lgkmcnt(0)")
    srd(a, SW, P_W, 1024*3072*2); srd(a, SX, P_X, 2048*2048)
    def wrap(s_): a(f"s_add_u32 s{s_}, s{s_}, 393216\ns_cmp_eq_u32 s{s_}, {1024*6144}\ns_cselect_b32 s{s_}, 0, s{s_}")
    def issueA(slot, tag):
        a(f"s_add_u32 m0, s{sLA}, {LA+slot*16384}")
        for j in range(4): a(f"buffer_load_dwordx4 v{vA+j}, {S(SX)}, s{sAo} offen offset:{j*1024} {AM} lds")
        a(f"s_add_u32 s{sAo}, s{sAo}, 128\ns_and_b32 s{sAo}, s{sAo}, 2047"); vm.issue(tag, 4)
    def issueW(slot, tag):
        for e in range(4):
            if e % 2 == 0: a(f"s_add_u32 m0, s{sLW}, {LW+slot*16384+(e>>1)*8192}")
            a(f"buffer_load_dwordx4 v{vW+e}, {S(SW)}, s{sWo} offen offset:{(e&1)*1024} {WM} lds")
        wrap(sWo); vm.issue(tag, 4)
    def issueQ(ldsbase, tag, adv=True):
        a(f"s_add_u32 m0, s{sLW}, {ldsbase}")
        for e in range(2): a(f"buffer_load_dwordx4 v{vQ+e}, {S(SW)}, s{sQo} offen offset:{e*1024} {WM} lds")
        if adv: wrap(sQo)
        vm.issue(tag, 2)
    vL16 = 3
    vN = 18
    vT = 19
    ONES = 20; CSA = 24
    FR = 36
    GC = 52; GK = 68; GS = 72
    XS = 76
    DUP = 80; MSK = 88; AF = 92; GUA = 100
    WG_ = 128; WU_ = 160
    def setup2():
        a(f"v_lshlrev_b32 v{vL16}, 4, v1")
        srd(a, SWS, P_WS, WS_SIZE); srd(a, SA, P_DBG, 256); srd(a, SB, P_PHI, 65536)
        for i in range(4): a(f"v_mov_b32 v{ONES+i}, 0x3f803f80")
        a("v_lshrrev_b32 v5, 4, v1\nv_lshlrev_b32 v4, 3, v5\nv_bfe_u32 v6, v1, 2, 2\nv_add_u32 v4, v4, v6\nv_lshlrev_b32 v4, 7, v4")
        a(f"v_bfe_u32 v6, v1, 3, 2\nv_xor_b32 v6, s{lw}, v6\nv_and_b32 v5, 3, v1\nv_lshl_add_u32 v4, v5, 3, v4\nv_lshl_add_u32 v{vT}, v6, 5, v4\nv_add_u32 v{vT}, {LW}, v{vT}")
        ids2()
        a("s_mov_b32 s70, 0")
    def nonce_load(): a(f"v_mov_b32 v5, 0\nbuffer_load_dword v{vN}, v5, {S(SA)}, 0 offen sc1")
    def colsum(segs):
        for n, (off, acc) in enumerate(segs):
            for ks in range(2):
                for u in range(2):
                    a(f"ds_read_b64_tr_b16 {V(FR+8*n+4*ks+2*u,2)}, v{vT} offset:{off+(32*ks+4*u)*128}")
        a("s_waitcnt lgkmcnt(0)")
        for ks in range(2):
            for n, (off, acc) in enumerate(segs): mfma(a, acc, ONES, FR+8*n+4*ks, '0' if ks == 0 else None)
    def publish():
        vm.wait('N')
        a("L_non:")
        a(f"v_cmp_eq_u32 vcc, 0, v{vN}\nv_cndmask_b32 v6, 0, 1, vcc")
        spin_check(a, "L_non", 6, nonce_load)
        a(f"v_readfirstlane_b32 s{sNON}, v{vN}")
        a(f"v_mov_b32 v{FR}, v{CSA}\nv_mov_b32 v{FR+1}, v{CSA+4}\nv_mov_b32 v{FR+2}, v{CSA+8}\nv_mov_b32 v{FR+3}, v{vN}")
        a(f"s_lshl_b32 s3, s{sHP}, 4\ns_add_u32 s3, s3, s{sMT}\ns_lshl_b32 s3, s3, 10\ns_lshl_b32 s65, s{lw}, 8\ns_add_u32 s3, s3, s65\ns_add_u32 s3, s3, {WS_CS}")
        a(f"s_mov_b64 exec, 0xffff\nbuffer_store_dwordx4 {V(FR)}, v{vL16}, {S(SWS)}, s3 offen sc1\ns_mov_b64 exec, -1"); vm.issue('st')
        a(f"s_cmp_lg_u32 s{lw}, 0\ns_cbranch_scc1 L_npub")
        a(f"v_and_b32 v5, 7, v1\nv_lshlrev_b32 v5, 3, v5\nv_add_u32 v6, {L_PUB}, v5\nds_read_b64 {V(FR+4,2)}, v6\ns_waitcnt lgkmcnt(0)")
        a(f"v_mov_b32 v{FR+8}, v{FR+5}")
        for m in ("quad_perm:[1,0,3,2]", "quad_perm:[2,3,0,1]", "row_half_mirror"):
            a(f"v_max_u32 v{FR+8}, v{FR+8}, v{FR+8} {m} {DPPM}")
        a(f"v_cmp_eq_u32 vcc, v{FR+8}, v{FR+5}\nv_mov_b32 v{FR+9}, v{FR+4}\nv_mov_b32 v{FR+10}, v{vN}\nv_mov_b32 v{FR+11}, v{vN}\nv_mov_b32 v{FR+5}, v{vN}\nv_mov_b32 v6, 0")
        a(f"s_lshl_b32 s3, s{sMT}, 4\ns_add_u32 s3, s3, s{sHP}\ns_lshl_b32 s3, s3, 6\ns_add_u32 s3, s3, {WS_STAT}\ns_mov_b64 exec, 0xff")
        a(f"buffer_store_dwordx2 {V(FR+4,2)}, v5, {S(SWS)}, s3 offen sc1")
        a(f"s_lshl_b32 s3, s2, 4\ns_add_u32 s3, s3, {WS_KEY}\ns_and_b64 exec, exec, vcc")
        a(f"buffer_store_dwordx4 {V(FR+8)}, v6, {S(SWS)}, s3 offen sc1\ns_mov_b64 exec, -1")
        a("L_npub:")
    def fetch():
        a(f"s_lshl_b32 s3, s{sHP}, 4\ns_lshl_b32 s65, s{lw}, 2\ns_add_u32 s3, s3, s65\ns_lshl_b32 s3, s3, 10\ns_add_u32 s3, s3, {WS_CS}")
        for i in range(4): a(f"buffer_load_dwordx4 {V(GC+4*i)}, v{vL16}, {S(SWS)}, s3 offen offset:{i*1024} sc1")
        a(f"s_lshl_b32 s3, s{lw}, 10\ns_add_u32 s3, s3, {WS_KEY}\nbuffer_load_dwordx4 {V(GK)}, v{vL16}, {S(SWS)}, s3 offen sc1")
        a(f"s_cmp_lt_u32 s{lw}, 2\ns_cselect_b32 s3, s{sMT}, s{sMT2}\ns_lshl_b32 s3, s3, 10\ns_and_b32 s65, s{lw}, 1\ns_lshl_b32 s65, s65, 9\ns_add_u32 s3, s3, s65\nv_lshlrev_b32 v5, 3, v1")
        a(f"buffer_load_dwordx2 {V(GS,2)}, v5, {S(SWS)}, s3 offen offset:{WS_STAT} sc1")
    def proc():
        vm.wait('F')
        a("L_x0:")
        a(f"v_xor_b32 v6, v{GS+1}, v{vN}\nv_xor_b32 v7, v{GK+2}, v{vN}\nv_or_b32 v6, v6, v7")
        for i in range(4): a(f"v_xor_b32 v7, v{GC+4*i+3}, v{vN}\nv_or_b32 v6, v6, v7")
        spin_check(a, "L_x0", 6, fetch)
        pk(a, "v_pk_add_f32", GC, [GC, GC+4]); pk(a, "v_pk_add_f32", GC+8, [GC+8, GC+12]); pk(a, "v_pk_add_f32", GC, [GC, GC+8])
        a(f"v_add_f32 v{GC+2}, v{GC+2}, v{GC+6}\nv_add_f32 v{GC+10}, v{GC+10}, v{GC+14}\nv_add_f32 v{GC+2}, v{GC+2}, v{GC+10}")
        a(f"s_lshl_b32 s3, s{lw}, 10\ns_add_u32 s3, s3, {L_CSP}\nv_add_u32 v5, s3, v{vL16}\nds_write_b128 v5, {V(GC)}")
        a(f"v_and_b32 v{GS+1}, 0xffff0000, v{GS}\nv_rcp_f32 v6, v{GS+1}\nv_lshlrev_b32 v7, 16, v{GS}")
        a(f"s_lshr_b32 s3, s{lw}, 1\ns_mul_i32 s3, s3, 1536\ns_and_b32 s65, s{lw}, 1\ns_lshl_b32 s66, s65, 8\ns_add_u32 s66, s66, s3\ns_add_u32 s66, s66, {L_ST1}\nv_lshl_add_u32 v5, v1, 2, s66")
        a(f"v_fma_f32 v4, -v6, v{GS+1}, 1.0\nv_fmac_f32 v6, v4, v6\nds_write_b32 v5, v7\nds_write_b32 v5, v6 offset:512")
        a(f"s_lshl_b32 s66, s65, 7\ns_add_u32 s66, s66, s3\ns_add_u32 s66, s66, {L_ST1+1024}\nv_lshl_add_u32 v5, v1, 1, s66\nds_write_b16_d16_hi v5, v{GS}")
        a(f"v_mov_b32 v6, v{GK}")
        for m in ("quad_perm:[1,0,3,2]", "quad_perm:[2,3,0,1]", "row_half_mirror", "row_mirror"):
            a(f"v_max_u32 v6, v6, v6 {m} {DPPM}")
        for sw in ("16", "32"):
            a(f"v_mov_b32 v7, v6\nv_permlane{sw}_swap_b32 v6, v7\nv_max_u32 v6, v6, v7")
        a(f"v_cmp_eq_u32 vcc, v6, v{GK}\ns_lshl_b32 s3, s{lw}, 3\ns_add_u32 s3, s3, {L_KEY}\nv_mov_b32 v5, s3\ns_mov_b64 exec, vcc\nds_write_b64 v5, {V(GK,2)}\ns_mov_b64 exec, -1")
        a("s_waitcnt lgkmcnt(0)")
    def comb():
        a(f"v_add_u32 v5, {L_CSP}, v{vL16}")
        for i in range(4): a(f"ds_read_b128 {V(GC+4*i)}, v5 offset:{i*1024}")
        a(f"v_and_b32 v6, 3, v1\nv_lshlrev_b32 v6, 3, v6\nv_add_u32 v6, {L_KEY}, v6\nds_read_b64 {V(GK,2)}, v6\ns_waitcnt lgkmcnt(0)")
        a(f"v_mov_b32 v6, v{GK}")
        for m in ("quad_perm:[1,0,3,2]", "quad_perm:[2,3,0,1]"): a(f"v_max_u32 v6, v6, v6 {m} {DPPM}")
        pk(a, "v_pk_add_f32", GC, [GC, GC+4]); pk(a, "v_pk_add_f32", GC+8, [GC+8, GC+12]); pk(a, "v_pk_add_f32", GC, [GC, GC+8])
        a(f"v_add_f32 v{GC+2}, v{GC+2}, v{GC+6}\nv_add_f32 v{GC+10}, v{GC+10}, v{GC+14}\nv_add_f32 v{GC+2}, v{GC+2}, v{GC+10}")
        a(f"v_cmp_eq_u32 vcc, v6, v{GK}\nv_lshlrev_b32 v5, 2, v1\nv_add_u32 v5, {L_CS}, v5\ns_ff1_i32_b64 s3, vcc\nv_readfirstlane_b32 s{sKEY}, v6")
        a(f"ds_write_b32 v5, v{GC}\nds_write_b32 v5, v{GC+1} offset:256\nds_write_b32 v5, v{GC+2} offset:512")
        a(f"v_readlane_b32 s{sSTAT}, v{GK+1}, s3")
        a(f"v_mov_b32 v7, v{vN}\nv_mov_b32 v5, {L_KEY}\nds_write_b64 v5, v[6:7] offset:32")
        a(f"s_and_b32 s{sIDX}, s{sKEY}, 0x7ff\ns_sub_u32 s{sIDX}, 2047, s{sIDX}\ns_lshr_b32 s3, s{sIDX}, 7\ns_cmp_eq_u32 s3, s{sMT2}\ns_cselect_b32 s{sOWN}, 1, 0")
        a(f"s_lshl_b32 s3, s{sIDX}, 11\ns_and_b32 s65, s2, 3\ns_lshl_b32 s65, s65, 9\ns_add_u32 s3, s3, s65\ns_lshl_b32 s65, s{lw}, 7\ns_add_u32 s3, s3, s65\nv_lshrrev_b32 v5, 3, v1\nv_lshlrev_b32 v5, 4, v5")
        a(f"buffer_load_dwordx4 {V(XS)}, v5, {S(SX)}, s3 offen"); vm.issue('xs')
        a("s_waitcnt lgkmcnt(0)")
    vF = 2; sFo = 77
    ffn_n = [0]
    def ffn_setup():
        srd(a, SA, P_WG, 1024*3584*2); srd(a, SB, P_WU, 1024*3584*2)
        a(f"s_cmp_lt_u32 s2, 224\ns_cselect_b32 s{SA+2}, s{SA+2}, 0\ns_cselect_b32 s{SB+2}, s{SB+2}, 0")
        a(f"s_and_b32 s3, s2, 3\ns_lshl_b32 s3, s3, 8\ns_lshl_b32 s65, s{lw}, 6\ns_add_u32 s3, s3, s65\nv_and_b32 v5, 0x38, v1\nv_add_u32 v5, s3, v5\nv_mul_u32_u24 v5, 7168, v5")
        a(f"v_and_b32 v6, 7, v1\nv_lshl_add_u32 v{vF}, v6, 4, v5\ns_lshr_b32 s{sFo}, s2, 2\ns_lshl_b32 s{sFo}, s{sFo}, 7")
    def ffn_load(n):
        for _ in range(n):
            i = ffn_n[0]; ffn_n[0] += 1
            a(f"buffer_load_dwordx4 {V(WG_+4*i)}, v{vF}, {S(SA)}, s{sFo} offen nt\nbuffer_load_dwordx4 {V(WU_+4*i)}, v{vF}, {S(SB)}, s{sFo} offen nt\ns_add_u32 s{sFo}, s{sFo}, 7168")
            vm.issue(('ffn', i), 2)
    def masks():
        a(f"v_and_b32 v5, 1, v1\nv_cmp_eq_u32 vcc, 0, v5\nv_mov_b32 v6, 0xffff0000\nv_mov_b32 v7, 0xffff\nv_cndmask_b32 v6, v6, v7, vcc\nv_bfe_u32 v5, v1, 1, 2")
        for q in range(4): a(f"v_cmp_eq_u32 vcc, {q}, v5\nv_cndmask_b32 v{MSK+q}, 0, v6, vcc")
    def xsel():
        vm.wait('xs')
        a(f"s_lshl_b32 s65, s{sSTAT}, 16\ns_and_b32 s66, s{sSTAT}, 0xffff0000\nv_rcp_f32 v6, s66")
        for d in range(4): a(f"v_lshlrev_b32 v{DUP+2*d}, 16, v{XS+d}\nv_and_b32 v{DUP+2*d+1}, 0xffff0000, v{XS+d}")
        a(f"v_fma_f32 v4, -v6, s66, 1.0\nv_fmac_f32 v6, v4, v6")
        for i in range(8): a(f"v_subrev_f32 v{DUP+i}, s65, v{DUP+i}")
        for i in range(8): a(f"v_cvt_pk_bf16_f32 v{DUP+i}, v{DUP+i}, v{DUP+i}")
        for i in range(8): a(f"v_lshlrev_b32 v{DUP+i}, 16, v{DUP+i}")
        for i in range(8): a(f"v_mul_f32 v{DUP+i}, v{DUP+i}, v6")
        for i in range(8): a(f"v_cvt_pk_bf16_f32 v{DUP+i}, v{DUP+i}, v{DUP+i}")
    def ffn_mm(i0, i1):
        for i in range(i0, i1):
            vm.wait(('ffn', i))
            f = AF+4*(i & 1)
            for q in range(4): a(f"v_and_b32 v{f+q}, v{DUP+i}, v{MSK+q}")
            mfma(a, GUA, f, WG_+4*i, '0' if i == 0 else None); mfma(a, GUA+4, f, WU_+4*i, '0' if i == 0 else None)
    def ffn_pub():
        for j in range(4): a(f"v_permlane32_swap_b32 v{GUA+j}, v{GUA+4+j}")
        for j in range(4): a(f"v_add_f32 v{GUA+j}, v{GUA+4+j}, v{GUA+j} row_ror:8 {DPPM}")
        a(f"v_lshrrev_b32 v5, 5, v1\nv_mul_u32_u24 v7, 3584, v5\nv_and_b32 v5, 7, v1\nv_lshl_add_u32 v7, v5, 3, v7\nv_bfe_u32 v5, v1, 4, 1\nv_lshl_add_u32 v7, v5, 2, v7\nv_lshlrev_b32 v7, 7, v7")
        a(f"s_lshr_b32 s3, s2, 2\ns_lshl_b32 s3, s3, 13\ns_and_b32 s65, s2, 3\ns_lshl_b32 s65, s65, 5\ns_add_u32 s3, s3, s65\ns_lshl_b32 s65, s{lw}, 3\ns_add_u32 s3, s3, s65\ns_add_u32 s3, s3, {WS_GU}")
        for j in range(4): a(f"v_mov_b32 v{AF+2*j}, v{GUA+j}\nv_mov_b32 v{AF+2*j+1}, v{vN}")
        a("s_cmp_ge_u32 s2, 224\ns_cbranch_scc1 L_nogu\ns_mov_b32 s66, 0x00ff00ff\ns_mov_b32 s67, 0x00ff00ff\ns_mov_b64 exec, s[66:67]")
        for j in range(4): a(f"buffer_store_dwordx2 {V(AF+2*j,2)}, v7, {S(SWS)}, s3 offen offset:{128*j} sc1")
        a("s_mov_b64 exec, -1\nL_nogu:")
    def flag_store(addr):
        a(addr)
        a(f"v_mov_b32 v5, 0\ns_mov_b64 exec, 1\nbuffer_store_dword v{vN}, v5, {S(SWS)}, s3 offen sc1\ns_mov_b64 exec, -1")
    def kflag():
        a(f"s_cmp_lg_u32 s{lw}, 0\ns_cbranch_scc1 L_nkf")
        flag_store(f"s_lshl_b32 s3, s{sHP}, 7\ns_lshl_b32 s65, s{sMT}, 2\ns_add_u32 s3, s3, s65\ns_add_u32 s3, s3, {WS_KFLAG}")
        a("L_nkf:")
    vKF = 19
    def kpoll():
        a(f"s_lshl_b32 s3, s{sHP}, 7\ns_add_u32 s3, s3, {WS_KFLAG}\nv_and_b32 v5, 15, v1\nv_lshlrev_b32 v5, 2, v5\nbuffer_load_dword v{vKF}, v5, {S(SWS)}, s3 offen sc1")
    GP = 112; ZP = 52; ID = 20; KVA = 36
    gat_n = [0]
    def kcheck():
        vm.wait('kf')
        a(f"L_kf:\nv_xor_b32 v6, v{vKF}, v{vN}")
        spin_check(a, "L_kf", 6, kpoll)
        a(f"s_lshl_b32 s{sFo}, s{sHP}, 5\ns_mul_i32 s{sFo}, s{sFo}, {KVS}\ns_add_u32 s{sFo}, s{sFo}, {WS_KVP}\ns_and_b32 s3, s{lw}, 1\ns_mul_i32 s3, s3, {16*KVS}\ns_add_u32 s3, s3, s{sFo}\ns_add_u32 s3, s3, 4096")
        a(f"v_lshrrev_b32 v5, 4, v1\nv_mul_u32_u24 v5, {KVS}, v5\nv_and_b32 v6, 15, v1\nv_lshl_add_u32 v5, v6, 4, v5")
        for i in range(4): a(f"buffer_load_dwordx4 {V(ZP+4*i)}, v5, {S(SWS)}, s3 offen\ns_add_u32 s3, s3, {4*KVS}")
        vm.issue('z', 4)
        a(f"s_lshl_b32 s3, s{lw}, 10\ns_add_u32 s{sFo}, s{sFo}, s3")
    def gather(n):
        for _ in range(n):
            i = gat_n[0]; gat_n[0] += 1
            a(f"buffer_load_dwordx4 {V(GP+4*i)}, v{vL16}, {S(SWS)}, s{sFo} offen\ns_add_u32 s{sFo}, s{sFo}, {KVS}"); vm.issue(('g', i))
    def ident():
        a(f"v_and_b32 v5, 1, v1\nv_cmp_eq_u32 vcc, 0, v5\nv_mov_b32 v6, 0x3f800000\nv_mov_b32 v7, 0x3f80\nv_cndmask_b32 v6, v6, v7, vcc")
        a(f"v_lshrrev_b32 v5, 4, v1\nv_bfe_u32 v7, v1, 2, 2\nv_cmp_eq_u32 vcc, v5, v7\nv_cndmask_b32 v6, 0, v6, vcc\nv_and_b32 v5, 2, v1\nv_cmp_eq_u32 vcc, 0, v5")
        a(f"v_cndmask_b32 v{ID}, 0, v6, vcc\nv_cndmask_b32 v{ID+1}, v6, 0, vcc\nv_mov_b32 v{ID+2}, 0\nv_mov_b32 v{ID+3}, 0\nv_mov_b32 v{ID+4}, v{ID}\nv_mov_b32 v{ID+5}, v{ID+1}")

    def do(items):
        for it in items:
            if it[0] == 'A': n = int(it[1:]); issueA(n % 4, ('s', n))
            elif it[0] == 'W': n = int(it[1:]); issueW(n % 4, ('s', n))
            elif it == 'S': setup2()
            elif it == 'N': nonce_load(); vm.issue('N')
            elif it == 'Q': issueQ(L_QS, 'qs', False)
            elif it == 'P':
                a(f"s_lshl_b32 s3, s{lw}, 10\ns_add_u32 m0, s3, {L_PHI}\ns_lshl_b32 s65, s{sHP}, 12\ns_add_u32 s65, s65, s3\nbuffer_load_dwordx4 v{vL16}, {S(SB)}, s65 offen lds"); vm.issue('phi')
            elif it == 'ck': colsum([(0, CSA+4), (8192, CSA+8)])
            elif it == 'wq': vm.wait('qs', 'phi')
            elif it == 'cq':
                a(f"v_add_u32 v{vT}, {L_QS-LW}, v{vT}"); colsum([(0, CSA)])
            elif it == 'pub': publish()
            elif it == 'F': fetch(); vm.issue('F', 6)
            elif it == 'proc': proc()
            elif it == 'comb': comb()
            elif it == 'fs': ffn_setup()
            elif it[0] == 'f': ffn_load(int(it[1:]))
            elif it == 'mk': masks()
            elif it == 'xs': xsel()
            elif it[0] == 'm': i0 = int(it[1:]); ffn_mm(i0, i0+2)
            elif it == 'gu': ffn_pub()
            elif it == 'kfl': kflag()
            elif it == 'kp': kpoll(); vm.issue('kf')
            elif it == 'kc': kcheck()
            elif it[0] == 'g': gather(int(it[1:]))
            elif it == 'id': ident()
            else: raise ValueError(it)
    P1 = opt('p1', "W0 A0 W1 S|A1 W2 ck|A2 A3 W3 N|A4 W4 A5 W5 Q P").replace('_', ' ').split('|')
    X1 = {4: "wq", 5: "cq pub", 6: "mk", 7: "fs", 10: "F", 12: "proc", 13: "comb", 14: "f%d" % opt('f14', 1), 15: "f%d" % opt('f15', 2)}
    do(P1[0].split())
    for s in range(16):
        vm.wait(('s', s))
        a("s_barrier")
        if s+1 < len(P1): do(P1[s+1].split())
        elif s+3 < 16: do([f"A{s+3}", f"W{s+3}"])
        else:
            if s == 13: a(f"s_add_u32 s{sQo}, s{sROT}, 12\ns_and_b32 s{sQo}, s{sQo}, 15\ns_mul_i32 s{sQo}, s{sQo}, 393216")
            for h in range(2): issueQ(LW+(2*(s-13)+h)*8192, ('q', 2*(s-13)+h))
        if s in X1: do(X1[s].split())
    a("s_barrier")
    stamp(a, 0)
    for h in range(2): issueQ(LW+(6+h)*8192, ('q', 6+h))
    ffn_load(8-ffn_n[0])
    xsel()
    stamp(a, 1)
    X2 = {5: "kfl id", 6: "m0", 7: "m2", 8: "m4", 9: "m6", 10: "kp gu", 12: "kc g6", 13: "g6", 14: "g6", 15: "g6"}
    if opt('dbgffn', 0):
        do("m0 m2 m4 m6".split()); X2 = {5: "kfl id", 10: "kp gu", 12: "kc g6", 13: "g6", 14: "g6", 15: "g6"}
    for t in range(16):
        vm.wait(('q', t), ('a', t))
        a("s_barrier")
        if t >= 1 and t+3 < 16: issueA((t+3) % 4, ('a', t+3))
        if t >= 1 and t+7 < 16: issueQ(LW+((t+7) % 8)*8192, ('q', t+7))
        if t in X2: do(X2[t].split())
    a("s_barrier")
    stamp(a, 2)
    gather(32-gat_n[0])
    if opt('dbgsleep', 0): a("s_sleep 100")
    vWo = 8
    srd(a, SA, P_WO, 1024*1024*2); srd(a, SB, P_WD, 3584*1024*2); srd(a, SC, P_OUT, 2048*2048)
    a(f"v_lshrrev_b32 v5, 3, v1\nv_lshlrev_b32 v5, 11, v5\nv_lshrrev_b32 v6, 4, v1\nv_lshlrev_b32 v6, 1, v6\nv_and_b32 v7, 7, v1\nv_xor_b32 v6, v6, v7\nv_lshl_add_u32 v5, v6, 4, v5\ns_lshl_b32 s3, s{sNB}, 7\nv_add_u32 v{vWo}, s3, v5")
    for e in range(1, 4): a(f"v_add_u32 v{vWo+e}, {e*15360}, v{vWo}")
    a(f"s_lshl_b32 s{sAo}, s{lw}, 16")
    WOM = opt('wom', 'nt')
    def wo(i):
        a(f"s_add_u32 m0, s{sLA}, {i*16384}")
        for e in range(4): a(f"buffer_load_dwordx4 v{vWo+e}, {S(SA)}, s{sAo} offen offset:{e*1024} {WOM} lds")
        a(f"s_add_u32 s{sAo}, s{sAo}, 262144"); vm.issue('wo', 4)
    vm.wait('z')
    for j in (0, 2):
        pk(a, "v_pk_add_f32", ZP+j, [ZP+j, ZP+4+j]); pk(a, "v_pk_add_f32", ZP+8+j, [ZP+8+j, ZP+12+j])
    for j in (0, 2): pk(a, "v_pk_add_f32", ZP+j, [ZP+j, ZP+8+j])
    for sw in ("16", "32"):
        for j in range(4): a(f"v_mov_b32 v{ZP+4+j}, v{ZP+j}")
        for j in range(4): a(f"v_permlane{sw}_swap_b32 v{ZP+j}, v{ZP+4+j}")
        for j in (0, 2): pk(a, "v_pk_add_f32", ZP+j, [ZP+j, ZP+4+j])
    a(f"v_cvt_pk_bf16_f32 v{ZP}, v{ZP}, v{ZP+1}\nv_cvt_pk_bf16_f32 v{ZP+1}, v{ZP+2}, v{ZP+3}")
    a(f"s_and_b32 s3, s{lw}, 1\ns_lshl_b32 s3, s3, 7\ns_add_u32 s3, s3, {L_ZB}\nv_and_b32 v5, 15, v1\nv_lshl_add_u32 v5, v5, 3, s3\nds_write_b64 v5, {V(ZP,2)}")
    nwo = 0
    for i in range(32):
        if i % 4 == 0: vm.wait(('g', i+3))
        acc = KVA+8*(i >> 4); z = '0' if i % 16 == 0 else None
        mfma(a, acc, ID, GP+4*i, z); mfma(a, acc+4, ID+2, GP+4*i, z)
        if i >= 16 and i % 8 == 3 and nwo < opt('woe', 2): wo(nwo); nwo += 1
    a(f"s_lshl_b32 s3, s{lw}, 10\ns_add_u32 s3, s3, {L_KVF}\nv_add_u32 v5, s3, v{vL16}")
    for h in range(2):
        for d in range(4): a(f"v_cvt_pk_bf16_f32 v{ZP+4+4*h+d}, v{KVA+8*h+2*d}, v{KVA+8*h+2*d+1}")
        a(f"ds_write_b128 v5, {V(ZP+4+4*h)} offset:{h*4096}")
    a("s_waitcnt lgkmcnt(0)")
    stamp(a, 3)
    a("s_barrier")
    for i in range(nwo, 8): wo(i)
    WD = 128; GU = 52; Y = 100
    a(f"s_cmp_lt_u32 s2, 224\ns_cselect_b32 s{SB+2}, s{SB+2}, 0\nv_lshrrev_b32 v5, 4, v1\nv_lshlrev_b32 v5, 11, v5\nv_and_b32 v6, 15, v1\nv_lshl_add_u32 v5, v6, 4, v5\ns_lshl_b32 s3, s2, 15\ns_lshl_b32 s65, s{lw}, 9\ns_add_u32 s3, s3, s65")
    for t in range(4):
        for ch in range(2): a(f"buffer_load_dwordx4 {V(WD+8*t+4*ch)}, v5, {S(SB)}, s3 offen offset:{ch*256} nt")
        if t < 3: a("s_add_u32 s3, s3, 8192")
    vm.issue('wd', 8)
    def gufetch():
        a(f"v_lshlrev_b32 v5, 5, v1\ns_min_u32 s3, s2, 223\ns_lshl_b32 s3, s3, 11\ns_add_u32 s3, s3, {WS_GU}\ns_add_u32 s65, s3, {3584*128}")
        for m_, sr in ((0, 3), (1, 65)):
            for e in range(2): a(f"buffer_load_dwordx4 {V(GU+8*m_+4*e)}, v5, {S(SWS)}, s{sr} offen offset:{16*e} sc1")
    gufetch(); vm.issue('gu', 4)
    vm.wait('wo')
    stamp(a, 4)
    a("s_barrier")
    vm.wait('gu')
    a(f"L_gu:\nv_xor_b32 v6, v{GU+1}, v{vN}")
    for j in range(1, 8): a(f"v_xor_b32 v7, v{GU+2*j+1}, v{vN}\nv_or_b32 v6, v6, v7")
    spin_check(a, "L_gu", 6, gufetch, 8)
    g = GU; u = GU+8
    for b in (g, u): a(f"v_add_f32 v{b}, v{b}, v{b+2}\nv_add_f32 v{b+4}, v{b+4}, v{b+6}")
    for b in (g, u): a(f"v_add_f32 v{b}, v{b}, v{b+4}")
    for m in ("quad_perm:[1,0,3,2]", "quad_perm:[2,3,0,1]"):
        for b in (g, u): a(f"v_add_f32 v{b}, v{b}, v{b} {m} {DPPM}")
    for b in (g, u): rne(a, b, b)
    a(f"v_mul_f32 v{g+1}, 0xbfb8aa3b, v{g}\nv_exp_f32 v{g+1}, v{g+1}\nv_add_f32 v{g+1}, 1.0, v{g+1}\nv_rcp_f32 v{g+1}, v{g+1}\nv_mul_f32 v{g}, v{g}, v{g+1}")
    rne(a, g, g)
    a(f"v_mul_f32 v{g}, v{g}, v{u}\nv_cvt_pk_bf16_f32 v{g}, v{g}, v{g}")
    a(f"v_lshrrev_b32 v5, 4, v1\nv_lshlrev_b32 v5, 4, v5")
    for t in range(4): a(f"ds_bpermute_b32 v{DUP+t}, v5, v{g} offset:{64*t}")
    a("s_waitcnt lgkmcnt(0)")
    for t in range(4):
        f = AF+4*(t & 1)
        for q in range(4): a(f"v_and_b32 v{f+q}, v{DUP+t}, v{MSK+q}")
        for ch in range(2): mfma(a, Y+4*ch, f, WD+8*t+4*ch, '0' if t == 0 else None)
    a(f"v_and_b32 v5, 15, v1\nv_lshlrev_b32 v5, 5, v5\nv_bfe_u32 v6, v1, 4, 1\nv_lshl_add_u32 v5, v6, 4, v5\nv_lshrrev_b32 v6, 5, v1\nv_lshl_add_u32 v5, v6, 9, v5\nv_cmp_eq_u32 vcc, 0, v6")
    a(f"s_lshl_b32 s3, s2, 12\ns_lshl_b32 s65, s{lw}, 10\ns_add_u32 s3, s3, s65\ns_add_u32 s3, s3, {WS_YP}")
    for j in range(4): a(f"v_cndmask_b32 v{Y+j}, v{Y+4+j}, v{Y+j}, vcc")
    a("s_cmp_ge_u32 s2, 224\ns_cbranch_scc1 L_noy")
    a(f"buffer_store_dwordx4 {V(Y)}, v5, {S(SWS)}, s3 offen sc1\ns_waitcnt vmcnt(0)\nL_noy:")
    flag_store(f"s_lshl_b32 s3, s{lw}, 10\ns_lshl_b32 s65, s2, 2\ns_add_u32 s3, s3, s65\ns_add_u32 s3, s3, {WS_YFLAG}")
    stamp(a, 5)
    if STAMPS: a(f"s_cmp_eq_u32 s{sOWN}, 0\ns_cbranch_scc1 L_g2end")
    else: a(f"s_cmp_eq_u32 s{sOWN}, 0\ns_cbranch_scc1 L_done")
    def yfl(): a(f"s_lshr_b32 s3, s{sNB}, 2\ns_lshl_b32 s3, s3, 10\ns_add_u32 s3, s3, {WS_YFLAG}\nbuffer_load_dwordx4 v[8:11], v{vL16}, {S(SWS)}, s3 offen sc1")
    yfl()
    a(f"s_waitcnt vmcnt(0)\nL_yf:\nv_xor_b32 v8, v8, v{vN}\nv_xor_b32 v9, v9, v{vN}\nv_xor_b32 v10, v10, v{vN}\nv_xor_b32 v11, v11, v{vN}\nv_or3_b32 v6, v8, v9, v10\nv_or_b32 v6, v6, v11")
    spin_check(a, "L_yf", 6, yfl, 8)
    YL = 128
    a(f"s_lshl_b32 s65, s{lw}, 2\nv_lshrrev_b32 v5, 4, v1\nv_add_u32 v5, s65, v5\nv_lshlrev_b32 v5, 12, v5\nv_and_b32 v6, 15, v1\nv_lshl_add_u32 v5, v6, 4, v5\ns_lshl_b32 s3, s{sNB}, 8\ns_add_u32 s3, s3, {WS_YP}")
    for i in range(14):
        a(f"buffer_load_dwordx4 {V(YL+4*i)}, v5, {S(SWS)}, s3 offen sc1")
        if i < 13: a("s_add_u32 s3, s3, 65536")
    a(f"s_lshl_b32 s68, s{sIDX}, 11\ns_lshl_b32 s3, s{sNB}, 7\ns_add_u32 s68, s68, s3\nv_lshlrev_b32 v7, 1, v1\nbuffer_load_ushort v8, v7, {S(SX)}, s68 offen")
    a(f"s_and_b32 s3, s{sKEY}, 0xfffff800\ns_xor_b32 s65, s3, 0x80000000\ns_not_b32 s66, s3\ns_and_b32 s66, s66, 0xfffff800\ns_bitcmp1_b32 s3, 31\ns_cselect_b32 s3, s65, s66\nv_mov_b32 v5, s3")
    rne(a, 5, 5)
    a("v_mul_f32 v5, 0xbfb8aa3b, v5\nv_exp_f32 v5, v5\nv_add_f32 v5, 1.0, v5\nv_rcp_f32 v5, v5")
    rne(a, 5, 5)
    a(f"s_lshl_b32 s65, s{sSTAT}, 16\ns_and_b32 s66, s{sSTAT}, 0xffff0000\nv_rcp_f32 v10, s66\ns_nop 0\nv_fma_f32 v4, -v10, s66, 1.0\nv_fmac_f32 v10, v4, v10")
    a("s_waitcnt vmcnt(0)")
    for i in range(2, 14):
        for j in (0, 2): pk(a, "v_pk_add_f32", YL+4*(i & 1)+j, [YL+4*(i & 1)+j, YL+4*i+j])
    for j in (0, 2): pk(a, "v_pk_add_f32", YL+j, [YL+j, YL+4+j])
    for sw in ("16", "32"):
        for j in range(4): a(f"v_mov_b32 v{YL+4+j}, v{YL+j}")
        for j in range(4): a(f"v_permlane{sw}_swap_b32 v{YL+j}, v{YL+4+j}")
        for j in (0, 2): pk(a, "v_pk_add_f32", YL+j, [YL+j, YL+4+j])
    a(f"s_lshl_b32 s3, s{lw}, 8\ns_add_u32 s3, s3, {L_YS}\nv_lshl_add_u32 v6, v6, 4, s3\nds_write_b128 v6, {V(YL)}")
    a("v_lshlrev_b32 v8, 16, v8\nv_subrev_f32 v9, s65, v8")
    rne(a, 9, 9)
    a("v_mul_f32 v9, v9, v10")
    rne(a, 9, 9)
    a(f"v_lshlrev_b32 v6, 2, v1\nv_add_u32 v6, {L_YS}, v6")
    a("s_waitcnt lgkmcnt(0)\ns_barrier")
    a(f"s_cmp_lg_u32 s{lw}, 0\ns_cbranch_scc1 {'L_g2end' if STAMPS else 'L_done'}")
    for k in range(4): a(f"ds_read_b32 v{12+k}, v6 offset:{256*k}")
    a(f"ds_read_b32 v16, v6 offset:{L_SROW-L_YS}\ns_waitcnt lgkmcnt(0)")
    a("v_add_f32 v12, v12, v13\nv_add_f32 v14, v14, v15\nv_add_f32 v12, v12, v14")
    rne(a, 12, 12)
    a("v_mul_f32 v12, v12, v5")
    rne(a, 12, 12)
    a("v_add_f32 v12, v12, v9")
    rne(a, 12, 12)
    a("v_mul_f32 v13, 0xbfb8aa3b, v12\nv_exp_f32 v13, v13\nv_add_f32 v13, 1.0, v13\nv_rcp_f32 v13, v13\nv_mul_f32 v12, v12, v13\nv_fmac_f32 v8, v12, v16\nv_cvt_pk_bf16_f32 v8, v8, v8")
    a(f"buffer_store_short v8, v7, {S(SC)}, s68 offen")
    if STAMPS:
        a("L_g2end:"); dump(a, 4)

def g1(a, ids2, kname):
    w = sWV
    a(f"s_and_b32 s{sTH}, s{w}, 1\ns_lshr_b32 s{sHH}, s{w}, 1")
    LX = 200; LWR = 216
    a(f"s_lshl_b32 s3, s{sMT}, 7\ns_lshl_b32 s65, s{sHP}, 3\ns_add_u32 s3, s3, s65\ns_lshl_b32 s65, s{w}, 1\ns_add_u32 s68, s3, s65\ns_lshl_b32 s3, s68, 11")
    a("v_and_b32 v3, 31, v1\nv_lshlrev_b32 v3, 4, v3\nv_lshrrev_b32 v4, 5, v1\nv_lshl_add_u32 v5, v4, 11, v3")
    a("s_waitcnt lgkmcnt(0)")
    srd(a, SX, P_X, 2048*2048); srd(a, SA, P_WR, 2048)
    for j in range(4): a(f"buffer_load_dwordx4 {V(LX+4*j)}, v5, {S(SX)}, s3 offen offset:{j*512}")
    for j in range(4): a(f"buffer_load_dwordx4 {V(LWR+4*j)}, v3, {S(SA)}, 0 offen offset:{j*512}")
    a(f"s_or_b32 s3, s2, s{w}\ns_cmp_lg_u32 s3, 0\ns_cbranch_scc1 L_nn")
    srd(a, SB, P_DBG, 256)
    a("s_memrealtime s[66:67]\ns_memtime s[70:71]\ns_waitcnt lgkmcnt(0)\ns_lshl_b32 s70, s70, 20\ns_xor_b32 s66, s66, s70\ns_or_b32 s66, s66, 1\nv_mov_b32 v6, s66\nv_mov_b32 v7, 0\ns_mov_b64 exec, 1")
    a(f"buffer_store_dword v6, v7, {S(SB)}, 0 offen sc1\ns_mov_b64 exec, -1\nL_nn:")
    NPF = opt('npf', 4)
    if NPF:
        a(f"s_getpc_b64 s[66:67]\nL_pc:\ns_sub_u32 s66, s66, L_pc-{kname}\ns_subb_u32 s67, s67, 0\ns_lshr_b32 s3, s2, 3\ns_lshl_b32 s3, s3, 2\ns_add_u32 s3, s3, s{w}\ns_lshl_b32 s3, s3, 6\ns_add_u32 s66, s66, s3\ns_addc_u32 s67, s67, 0")
        for i in range(NPF): a(f"s_load_dword s71, s[66:67], {i*8192}")
    srd(a, SWS, P_WS, WS_SIZE)
    ids2()
    a("s_mov_b32 s70, 0")
    ACC = 8; ACQ = 72; F = [104, 136]; vAa = 168; vWa = 170
    a(f"v_and_b32 v3, 15, v1\nv_lshlrev_b32 v6, 7, v3\ns_lshl_b32 s3, s{sTH}, 13\nv_add_u32 v6, s3, v6\nv_lshrrev_b32 v3, 1, v3\nv_lshrrev_b32 v2, 4, v1\nv_xor_b32 v3, v3, v2")
    a(f"v_lshl_add_u32 v{vAa}, v3, 4, v6\nv_xor_b32 v3, 4, v3\nv_lshl_add_u32 v{vAa+1}, v3, 4, v6")
    a("v_lshlrev_b32 v6, 3, v2\nv_bfe_u32 v7, v1, 2, 2\nv_add_u32 v6, v6, v7\nv_lshlrev_b32 v6, 7, v6\nv_and_b32 v7, 3, v1\nv_lshl_add_u32 v6, v7, 3, v6")
    a(f"v_bfe_u32 v7, v1, 3, 2\ns_lshl_b32 s3, s{sHH}, 1\nv_xor_b32 v7, s3, v7\nv_add_u32 v6, {LW}, v6\nv_lshl_add_u32 v{vWa}, v7, 5, v6\nv_xor_b32 v7, 1, v7\nv_lshl_add_u32 v{vWa+1}, v7, 5, v6")
    for i in range(0, 96, 2): a(f"v_mov_b64 {V(ACC+i,2)}, 0")
    for i in range(0, 32, 2): a(f"v_mov_b64 {V(F[1]+i,2)}, 0")
    R = 232
    a(f"v_mov_b32 v{R+4}, 0x3f803f80")
    for i in range(4): a(f"v_mov_b32 v{R+i}, 0")
    a("s_waitcnt vmcnt(0)")
    stamp(a, 40)
    for d in range(16):
        a(f"v_dot2_f32_bf16 v{R}, v{LX+d}, v{R+4}, v{R}\nv_dot2_f32_bf16 v{R+1}, v{LX+d}, v{LX+d}, v{R+1}\nv_dot2_f32_bf16 v{R+2}, v{LX+d}, v{LWR+d}, v{R+2}\nv_dot2_f32_bf16 v{R+3}, v{LWR+d}, v{R+4}, v{R+3}")
    for m in ("quad_perm:[1,0,3,2]", "quad_perm:[2,3,0,1]", "row_half_mirror", "row_mirror"):
        for i in range(4): a(f"v_add_f32 v{R+i}, v{R+i}, v{R+i} {m} {DPPM}")
    for i in range(4): a(f"v_mov_b32 v{R+4+i}, v{R+i}")
    for i in range(4): a(f"v_permlane16_swap_b32 v{R+i}, v{R+4+i}")
    for i in range(4): a(f"v_add_f32 v{R+i}, v{R+i}, v{R+4+i}")
    a(f"v_mul_f32 v{R}, 0x3a800000, v{R}\nv_mul_f32 v{R+1}, 0x3a800000, v{R+1}\nv_fma_f32 v{R+1}, -v{R}, v{R}, v{R+1}\nv_max_f32 v{R+1}, 0, v{R+1}")
    rne(a, R, R); rne(a, R+1, R+1)
    a(f"v_add_f32 v{R+1}, 0x3727c5ac, v{R+1}")
    rne(a, R+1, R+1)
    a(f"v_sqrt_f32 v{R+1}, v{R+1}\nv_fma_f32 v{R+2}, -v{R}, v{R+3}, v{R+2}")
    rne(a, R+1, R+1)
    a(f"v_rcp_f32 v{R+3}, v{R+1}\nv_lshrrev_b32 v{R}, 16, v{R}\nv_or_b32 v{R}, v{R}, v{R+1}\nv_mul_f32 v{R+2}, v{R+2}, v{R+3}")
    a(f"v_ashrrev_i32 v{R+3}, 31, v{R+2}\nv_or_b32 v{R+3}, 0x80000000, v{R+3}\nv_xor_b32 v{R+2}, v{R+2}, v{R+3}\nv_and_b32 v{R+2}, 0xfffff800, v{R+2}")
    a(f"s_sub_u32 s3, 2047, s68\nv_sub_u32 v{R+3}, s3, v4\nv_or_b32 v{R+1}, v{R+2}, v{R+3}")
    a(f"s_lshl_b32 s3, s{w}, 4\ns_add_u32 s3, s3, {L_PUB}\nv_lshl_add_u32 v{R+3}, v4, 3, s3\nds_write_b64 v{R+3}, {V(R,2)}")
    stamp(a, 41)
    def reads(sa, woff, ks, fs, nseg):
        f = F[fs]; L = []
        for seg in range(nseg):
            for ct in range(2):
                for u in range(2):
                    L.append(f"ds_read_b64_tr_b16 {V(f+16+8*seg+4*ct+2*u,2)}, v{vWa+ct} offset:{woff+seg*8192+(32*ks+4*u)*128}")
        A = [f"ds_read_b128 {V(f+4*tt)}, v{vAa+ks} offset:{sa*16384+tt*2048}" for tt in range(4)]
        return [A[0]]+L[0:4]+[A[1]]+L[4:8]+[A[2], A[3]]
    def mf1(fs):
        f = F[fs]; L = []
        for tt in range(4):
            for seg in range(2):
                for ct in range(2):
                    d = ACC+16*tt+8*seg+4*ct; W_ = f+16+8*seg+4*ct; X_ = f+4*tt
                    L.append((d, W_, X_) if seg == 0 else (d, X_, W_))
        return L
    def mf2(fs):
        f = F[fs]
        return [(ACQ+8*tt+4*ct, f+16+4*ct, f+4*tt) for tt in range(4) for ct in range(2)]
    def step(M, R_, first):
        if not first: a("s_waitcnt lgkmcnt(0)")
        for i, m in enumerate(M):
            mfma(a, *m)
            if i < len(R_): a(R_[i])
    def bar(extra=""):
        a(f"s_waitcnt {extra}lgkmcnt(0)\ns_barrier")
        if STAMPS: a("s_memrealtime s[98:99]")
    def rec():
        if STAMPS: a("v_writelane_b32 v255, s98, m0\ns_add_u32 m0, m0, 1")
    a("s_mov_b32 s69, 0")
    if STAMPS: a("s_mov_b32 m0, 0")
    a.raw(".p2align 6")
    a("L_c1:")
    for sl in range(4):
        bar()
        step(mf1(1), reads(sl, sl*16384, 0, 0, 2), True)
        step(mf1(0), reads(sl, sl*16384, 1, 1, 2), False)
        rec()
    a("s_add_u32 s69, s69, 1\ns_cmp_lt_u32 s69, 4\ns_cbranch_scc1 L_c1")
    bar()
    PHI = 172; MT = 180; CT = 248; CC = 181; RC = 183; CSV = 188; CSK = 192; MV = 200; SQF = 216; T = 224
    vS = 240
    a(f"v_and_b32 v3, 15, v1\ns_lshl_b32 s3, s{sTH}, 8\ns_add_u32 s3, s3, {L_ST1}\nv_lshl_add_u32 v{vS}, v3, 2, s3\nv_lshl_add_u32 v{vS+1}, v1, 2, s3\nv_lshl_add_u32 v{vS+2}, v2, 4, s3")
    a(f"s_lshl_b32 s3, s{sHH}, 7\ns_add_u32 s3, s3, {L_CS}\nv_lshl_add_u32 v{vS+3}, v2, 4, s3\nv_lshl_add_u32 v{vS+4}, v3, 2, s3")
    a(f"s_lshl_b32 s3, s{sTH}, 7\ns_add_u32 s3, s3, {L_ST1+1024}\nv_lshl_add_u32 v{vS+5}, v2, 3, s3")
    a(f"v_lshrrev_b32 v6, 2, v1\nv_lshlrev_b32 v6, 6, v6\nv_and_b32 v7, 3, v1\nv_lshl_add_u32 v6, v7, 3, v6\ns_lshl_b32 s3, s{sHH}, 11\ns_add_u32 s3, s3, {L_PHI}\nv_add_u32 v{vS+6}, s3, v6")
    RD = [f"ds_read_b32 v{MT+2*tt}, v{vS} offset:{64*tt}" for tt in range(4)]
    RD += [f"ds_read_b128 {V(CSK+4*ct)}, v{vS+3} offset:{256+64*ct}" for ct in range(2)]
    RD += [f"ds_read_b64_tr_b16 {V(PHI+4*ft+2*u,2)}, v{vS+6} offset:{u*1024+ft*32}" for ft in range(2) for u in range(2)]
    RD += [f"ds_read_b32 v{CT+2*tt}, v{vS} offset:{512+64*tt}" for tt in range(4)]
    RD += [f"ds_read_b32 v{RC}, v{vS+1} offset:512"]
    step(mf1(1), RD, True)
    for ct in range(2): a(f"ds_read_b32 v{CSV+2*ct}, v{vS+4} offset:{512+64*ct}")
    for tt in range(4): a(f"ds_read_b128 {V(MV+4*tt)}, v{vS+2} offset:{64*tt}")
    for u in range(2):
        for e in range(2): a(f"ds_read_b64 {V(SQF+4*u+2*e,2)}, v{vS+5} offset:{64*u+32*e}")
    a(f"s_mov_b32 s71, {LOG2E}\ns_waitcnt lgkmcnt(10)")
    BK = 104; P = 120; E = 104; BV = 72+0
    BV = 152
    for tt in range(4):
        for i in range(0, 8, 2): pk(a, "v_pk_fma_f32", ACC+16*tt+i, [('b', MT+2*tt), CSK+i, ACC+16*tt+i], [1, 0, 0])
        for i in range(4): a(f"v_cvt_pk_bf16_f32 v{BK+4*tt+i}, v{ACC+16*tt+2*i}, v{ACC+16*tt+2*i+1}")
    for tt in range(4): a(f"v_mul_f32 v{CT+2*tt}, s71, v{CT+2*tt}")
    a(f"v_mul_f32 v{CC}, s71, v{RC}\ns_waitcnt lgkmcnt(0)")
    rec()
    for tt in range(4):
        for ct in range(2):
            for i in (0, 2): pk(a, "v_pk_fma_f32", ACC+16*tt+8+4*ct+i, [MV+4*tt+i, ('b', CSV+2*ct), ACC+16*tt+8+4*ct+i], [1, 0, 0])
            for i in range(2): a(f"v_cvt_pk_bf16_f32 v{BV+8*(tt>>1)+4*ct+2*(tt&1)+i}, v{ACC+16*tt+8+4*ct+2*i}, v{ACC+16*tt+8+4*ct+2*i+1}")
    E = ACC
    features(a, BK, PHI, P, E, T, CT, CC)
    NP = [T+2*i for i in range(4)]; NM = [T+8+2*i for i in range(4)]
    a(f"v_rcp_f32 v{NP[0]}, v{NP[0]}\nv_rcp_f32 v{NM[0]}, v{NM[0]}")
    a(f"s_mul_i32 s3, s{w}, {KVS}\ns_add_u32 s3, s3, {L_SCR}\nv_mul_u32_u24 v6, {RS_}, v3\nv_lshl_add_u32 v6, v2, 3, v6\nv_add_u32 v{vS}, s3, v6")
    a(f"v_mul_f32 v{NP[0]}, v{NP[0]}, v{RC}\nv_mul_f32 v{NM[0]}, v{NM[0]}, v{RC}")
    a(f"v_lshrrev_b32 v6, 2, v1\nv_mul_u32_u24 v6, {RS_}, v6\nv_lshl_add_u32 v6, v7, 3, v6\nv_add_u32 v6, s3, v6\ns_lshl_b32 s65, s{sTH}, 6\nv_add_u32 v{vS+1}, s65, v6\ns_xor_b32 s65, s65, 64\nv_add_u32 v{vS+2}, s65, v6")
    tbcast(a, [NP, NM])
    PK_ = 104; AFR = 120; KV = 192; ZA = 8
    KV = 8; ZA = 40
    for u in range(2):
        for t2 in range(2):
            tt = 2*u+t2
            for sg, N_ in ((0, NP), (1, NM)):
                e = E+16*tt+8*sg
                for i in range(0, 8, 2): pk(a, "v_pk_mul_f32", e+i, [e+i, ('b', N_[tt])])
                for i in range(4): a(f"v_cvt_pk_bf16_f32 v{PK_+8*t2+4*sg+i}, v{e+2*i}, v{e+2*i+1}")
                for ft in range(2): a(f"ds_write_b64 v{vS}, {V(PK_+8*t2+4*sg+2*ft,2)} offset:{t2*16*RS_+sg*64+ft*32}")
        for fp in range(4):
            for e in range(2): a(f"ds_read_b64_tr_b16 {V(AFR+16*u+4*fp+2*e,2)}, v{vS+1+(fp>>1)} offset:{e*16*RS_+(fp&1)*32}")
    a("s_waitcnt lgkmcnt(0)")
    for fp in (2, 3, 0, 1):
        for u in range(2):
            z = '0' if u == 0 else None
            for ct in range(2): mfma(a, KV+8*fp+4*ct, AFR+16*u+4*fp, BV+8*u+4*ct, z)
            mfma(a, ZA+4*fp, AFR+16*u+4*fp, SQF+4*u, z)
    a(f"v_lshlrev_b32 v5, 4, v1\nv_add_u32 v{vS}, s3, v5\nv_lshl_add_u32 v{vS+1}, v2, 5, s3\ns_xor_b32 s65, s{w}, 1\ns_mul_i32 s65, s65, {KVS}\ns_add_u32 s65, s65, {L_SCR}\nv_add_u32 v{vS+2}, s65, v5\nv_lshl_add_u32 v{vS+3}, v2, 5, s65")
    for q in range(4): a(f"ds_write_b128 v{vS}, {V(KV+16+4*q)} offset:{q*1024}")
    for q in range(2): a(f"ds_write_b128 v{vS+1}, {V(ZA+8+4*q)} offset:{4096+q*16}")
    a(f"s_lshl_b32 s3, s{sHP}, 1\ns_add_u32 s3, s3, s{sHH}\ns_lshl_b32 s3, s3, 4\ns_add_u32 s3, s3, s{sMT}\ns_mul_i32 s3, s3, {KVS}\ns_add_u32 s3, s3, {WS_KVP}")
    a(f"s_lshl_b32 s65, s{sTH}, 7\ns_add_u32 s65, s65, s3\ns_add_u32 s65, s65, 4096\ns_lshl_b32 s66, s{sTH}, 11\ns_add_u32 s3, s3, s66\nv_lshlrev_b32 v6, 4, v2")
    stamp(a, 42)
    bar()
    X_ = 192
    for q in range(4): a(f"ds_read_b128 {V(X_+4*q)}, v{vS+2} offset:{q*1024}")
    for q in range(2): a(f"ds_read_b128 {V(X_+16+4*q)}, v{vS+3} offset:{4096+q*16}")
    for r_ in reads(0, 0, 0, 0, 1): a(r_)
    a("s_waitcnt lgkmcnt(8)")
    for i in range(0, 16, 2): pk(a, "v_pk_add_f32", KV+i, [KV+i, X_+i])
    for i in range(0, 8, 2): pk(a, "v_pk_add_f32", ZA+i, [ZA+i, X_+16+i])
    for ct in range(2):
        for fp in range(2):
            for i in range(2): a(f"v_cvt_pk_bf16_f32 v{X_+4*ct+2*fp+i}, v{KV+8*fp+4*ct+2*i}, v{KV+8*fp+4*ct+2*i+1}")
        a(f"buffer_store_dwordx4 {V(X_+4*ct)}, v5, {S(SWS)}, s3 offen offset:{ct*1024} sc1")
    a("s_mov_b32 s66, 0x00010001\ns_mov_b32 s67, 0x00010001\ns_mov_b64 exec, s[66:67]")
    for fp in range(2): a(f"buffer_store_dwordx4 {V(ZA+4*fp)}, v6, {S(SWS)}, s65 offen offset:{fp*64} sc1")
    a("s_mov_b64 exec, -1\ns_mov_b32 s69, 0\ns_branch L_c2e")
    a.raw(".p2align 6")
    a("L_c2:")
    for sl in range(8):
        bar("vmcnt(0) " if sl == 5 else "")
        step(mf2(1), reads(sl % 4, sl*8192, 0, 0, 1), True)
        if sl == 0: a("L_c2e:")
        step(mf2(0), reads(sl % 4, sl*8192, 1, 1, 1), False)
        rec()
    a("s_add_u32 s69, s69, 1\ns_cmp_lt_u32 s69, 2\ns_cbranch_scc1 L_c2")
    bar()
    a(f"s_lshl_b32 s3, s{sHH}, 7\ns_add_u32 s3, s3, {L_CS}\nv_lshl_add_u32 v{vS+3}, v2, 4, s3\nv_mov_b32 v{vS+4}, {L_KEY}")
    RD = [f"ds_read_b128 {V(CSK+4*ct)}, v{vS+3} offset:{64*ct}" for ct in range(2)] + [f"ds_read_b64 {V(MV,2)}, v{vS+4} offset:32"]
    step(mf2(1), RD, True)
    a("s_waitcnt lgkmcnt(0)")
    rec()
    a(f"v_readfirstlane_b32 s{sKEY}, v{MV}\nv_readfirstlane_b32 s{sNON}, v{MV+1}")
    for tt in range(4):
        for i in range(0, 8, 2): pk(a, "v_pk_fma_f32", ACQ+8*tt+i, [('b', MT+2*tt), CSK+i, ACQ+8*tt+i], [1, 0, 0])
        for i in range(4): a(f"v_cvt_pk_bf16_f32 v{BK+4*tt+i}, v{ACQ+8*tt+2*i}, v{ACQ+8*tt+2*i+1}")
    features(a, BK, PHI, P, E, T, CT, CC)
    a(f"v_rcp_f32 v{NM[0]}, v{NM[0]}")
    a(f"s_lshl_b32 s3, s{sHH}, 12\ns_add_u32 s3, s3, {L_KVF}\nv_add_u32 v{vS}, s3, v5\ns_lshl_b32 s3, s{sHH}, 7\ns_add_u32 s3, s3, {L_ZB}\nv_lshl_add_u32 v{vS+1}, v2, 3, s3")
    a(f"v_mul_f32 v{NM[0]}, v{NM[0]}, v{NP[0]}\nv_mul_f32 v{NP[0]}, 0x358637bd, v{NP[0]}")
    tbcast(a, [NP, NM])
    PQ = 72
    for tt in range(4):
        e = E+16*tt
        for i in range(0, 8, 2): pk(a, "v_pk_mul_f32", e+8+i, [e+8+i, ('b', NM[tt])])
        for i in range(8): a(f"v_cvt_pk_bf16_f32 v{PQ+8*tt+i}, v{e+2*i}, v{e+2*i+1}")
    a(f"s_and_b32 s{sIDX}, s{sKEY}, 0x7ff\ns_sub_u32 s{sIDX}, 2047, s{sIDX}\ns_lshr_b32 s3, s{sIDX}, 7\ns_cmp_eq_u32 s3, s{sMT2}\ns_cselect_b32 s{sOWN}, 1, 0")
    a(f"s_lshl_b32 s3, s{sMT}, 3\ns_lshl_b32 s65, s{sTH}, 2\ns_add_u32 s3, s3, s65\ns_lshl_b32 s3, s3, 5\ns_lshl_b32 s65, s{sHP}, 1\ns_add_u32 s65, s65, s{sHH}\ns_add_u32 s3, s3, s65\ns_lshl_b32 s3, s3, 10\ns_add_u32 s3, s3, {WS_O}")
    a(f"s_lshl_b32 s66, s{sMT}, 1\ns_add_u32 s66, s66, s{sTH}\ns_lshl_b32 s66, s66, 5\ns_add_u32 s66, s66, s65\ns_lshl_b32 s66, s66, 2\ns_add_u32 s66, s66, {WS_OFLAG}")
    stamp(a, 43)
    a("s_barrier")
    KF = 104; ZF = 120; NUM = 8; DEN = 40
    for q in range(4): a(f"ds_read_b128 {V(KF+4*q)}, v{vS} offset:{q*1024}")
    for sg in range(2):
        for e in range(2): a(f"ds_read_b64 {V(ZF+4*sg+2*e,2)}, v{vS+1} offset:{64*sg+32*e}")
    a("s_waitcnt lgkmcnt(0)")
    stamp(a, 44)
    for tt in range(4):
        for sg in range(2): mfma(a, DEN+4*tt, ZF+4*sg, PQ+8*tt+4*sg, '0' if sg == 0 else None)
    for tt in range(4):
        for ct in range(2):
            for sg in range(2): mfma(a, NUM+8*tt+4*ct, KF+8*sg+4*ct, PQ+8*tt+4*sg, '0' if sg == 0 else None)
        if tt == 0:
            for t_ in range(4): a(f"v_add_f32 v{DEN+4*t_}, v{DEN+4*t_}, v{NP[t_]}")
        if tt == 1:
            for t_ in range(4): a(f"v_rcp_f32 v{DEN+4*t_}, v{DEN+4*t_}")
    for tt in range(4):
        for i in range(0, 8, 2): pk(a, "v_pk_mul_f32", NUM+8*tt+i, [NUM+8*tt+i, ('b', DEN+4*tt)])
        for i in range(4): a(f"v_cvt_pk_bf16_f32 v{128+4*tt+i}, v{NUM+8*tt+2*i}, v{NUM+8*tt+2*i+1}")
        a(f"buffer_store_dwordx4 {V(128+4*tt)}, v5, {S(SWS)}, s3 offen sc1")
        if tt < 3: a("s_add_u32 s3, s3, 32768")
    stamp(a, 45)
    XR = 56; XF = 176; G = 208; vXo = 248; NR = 144
    srd(a, SC, P_OUT, 2048*2048)
    a(f"s_lshl_b32 s3, s{sMT2}, 7\ns_lshl_b32 s65, s{w}, 5\ns_add_u32 s3, s3, s65\nv_add_u32 v6, s3, v3\nv_lshlrev_b32 v6, 11, v6\nv_and_b32 v7, 1, v2\nv_lshl_add_u32 v6, v7, 5, v6\nv_lshrrev_b32 v7, 1, v2\nv_lshl_add_u32 v6, v7, 4, v6\ns_lshl_b32 s3, s{sNB}, 7\nv_add_u32 v{vXo}, s3, v6")
    a(f"s_lshl_b32 s3, s{w}, 7\ns_add_u32 s3, s3, {L_ST2}\nv_lshl_add_u32 v6, v3, 2, s3\ns_mov_b32 s68, 32768")
    for t2 in range(2): a(f"ds_read_b32 v{NR+2*t2}, v6 offset:{64*t2}\nds_read_b32 v{NR+4+2*t2}, v6 offset:{512+64*t2}")
    a(f"s_waitcnt vmcnt(0)\nv_mov_b32 v6, 0\nv_mov_b32 v7, s{sNON}\ns_mov_b64 exec, 1\nbuffer_store_dword v7, v6, {S(SWS)}, s66 offen sc1\ns_mov_b64 exec, -1")
    stamp(a, 46)
    for t2 in range(2):
        for e in range(2): a(f"buffer_load_dwordx4 {V(XR+8*t2+4*e)}, v{vXo}, {S(SX)}, {'0' if t2==0 else 's68'} offen offset:{64*e}")
    AC2 = 8; AR = 72; NA = 12; WF = [40, 56]; vWr = 250
    a("v_lshrrev_b32 v6, 2, v1\nv_lshlrev_b32 v6, 7, v6\nv_and_b32 v7, 3, v1\nv_lshl_add_u32 v6, v7, 3, v6\nv_bfe_u32 v7, v1, 3, 2")
    for c in range(4): a(f"v_xor_b32 v4, {c}, v7\nv_lshl_add_u32 v{vWr+c}, v4, 5, v6")
    a(f"s_lshl_b32 s72, s{sMT2}, 3\ns_lshl_b32 s3, s{w}, 1\ns_add_u32 s72, s72, s3\ns_lshl_b32 s72, s72, 15\ns_add_u32 s72, s72, {WS_O}\nv_add_u32 v4, 32768, v5")
    TT = 72
    a("s_mov_b32 s71, 0xbfb8aa3b\ns_waitcnt vmcnt(0) lgkmcnt(0)")
    for d in range(16): a(f"v_lshlrev_b32 v{XF+2*d}, 16, v{XR+d}\nv_and_b32 v{XF+2*d+1}, 0xffff0000, v{XR+d}")
    for j in range(0, 32, 2): pk(a, "v_pk_add_f32", G+j, [XF+j, ('b', NR+2*(j//16))], [0, 1])
    for d in range(16): a(f"v_cvt_pk_bf16_f32 v{TT+d}, v{G+2*d}, v{G+2*d+1}")
    for d in range(16): a(f"v_lshlrev_b32 v{G+2*d}, 16, v{TT+d}\nv_and_b32 v{G+2*d+1}, 0xffff0000, v{TT+d}")
    for j in range(0, 32, 2): pk(a, "v_pk_mul_f32", G+j, [G+j, ('b', NR+4+2*(j//16))])
    for d in range(16): a(f"v_cvt_pk_bf16_f32 v{TT+d}, v{G+2*d}, v{G+2*d+1}")
    for d in range(16): a(f"v_lshlrev_b32 v{G+2*d}, 16, v{TT+d}\nv_and_b32 v{G+2*d+1}, 0xffff0000, v{TT+d}")
    for j in range(32): a(f"v_mul_f32 v{TT+j}, s71, v{G+j}")
    for j in range(32): a(f"v_exp_f32 v{TT+j}, v{TT+j}")
    for j in range(32): a(f"v_add_f32 v{TT+j}, 1.0, v{TT+j}")
    for j in range(32): a(f"v_rcp_f32 v{TT+j}, v{TT+j}")
    for j in range(0, 32, 2): pk(a, "v_pk_mul_f32", G+j, [G+j, TT+j])
    stamp(a, 47)
    a("s_barrier")
    stamp(a, 48)
    def wreads(h):
        f = WF[h % 2]
        return [f"ds_read_b64_tr_b16 {V(f+4*c+2*e,2)}, v{vWr+c} offset:{(h%16)*4096+e*2048}" for c in range(4) for e in range(2)]
    for r_ in wreads(0): a(r_)
    def opoll(): a(f"buffer_load_dword v7, v6, {S(SWS)}, s3 offen sc1")
    a(f"s_lshl_b32 s3, s{sMT2}, 1\ns_lshr_b32 s65, s{w}, 1\ns_add_u32 s3, s3, s65\ns_lshl_b32 s3, s3, 7\ns_add_u32 s3, s3, {WS_OFLAG}\nv_and_b32 v6, 31, v1\nv_lshlrev_b32 v6, 2, v6")
    opoll()
    a(f"s_waitcnt vmcnt(0)\nL_op:\nv_xor_b32 v7, s{sNON}, v7")
    spin_check(a, "L_op", 7, opoll, opt('osl', 4))
    stamp(a, 49)
    vm = VM(a)
    def aload(h):
        r = AR+8*(h % NA)
        for t2 in range(2): a(f"buffer_load_dwordx4 {V(r+4*t2)}, v{5 if t2==0 else 4}, {S(SWS)}, s72 offen offset:{(h%4)*1024}")
        if h % 4 == 3: a("s_add_u32 s72, s72, 4096")
        vm.issue(h, 2)
    for h in range(NA-1): aload(h)
    for h in range(32):
        if h+NA-1 < 32: aload(h+NA-1)
        vm.wait(h)
        a("s_waitcnt lgkmcnt(0)")
        if h == 15:
            for c in range(4): a(f"v_add_u32 v{vWr+c}, 0x10000, v{vWr+c}")
        R_ = wreads(h+1) if h < 31 else []
        i = 0
        for t2 in range(2):
            for c in range(4):
                mfma(a, AC2+16*t2+4*c, WF[h % 2]+4*c, AR+8*(h % NA)+4*t2, '0' if h == 0 else None)
                if i < len(R_): a(R_[i])
                i += 1
    stamp(a, 50)
    a(f"s_bfe_u32 s3, s{sIDX}, 0x20005\ns_cmp_eq_u32 s3, s{w}\ns_cselect_b32 s3, s{sOWN}, 0\ns_and_b32 s65, s{sIDX}, 15\ns_lshl_b32 s66, 0x00010001, s65\ns_cmp_eq_u32 s3, 0\ns_cselect_b32 s66, 0, s66\ns_bfe_u32 s65, s{sIDX}, 0x10004")
    a(f"v_and_b32 v7, 1, v2\nv_lshlrev_b32 v6, 6, v7\nv_lshrrev_b32 v7, 1, v2\nv_lshl_add_u32 v6, v7, 5, v6\nv_add_u32 v6, {L_SROW}, v6")
    OUTM = opt('outm', 'nt')
    for t2 in range(2):
        for e in range(2):
            b = AC2+16*t2+8*e
            for j in range(4): a(f"v_permlane16_swap_b32 v{b+j}, v{b+4+j}")
        a(f"s_cmp_eq_u32 s65, {t2}\ns_cselect_b32 s74, s66, 0\ns_mov_b32 s75, s74")
        for e in range(2):
            b = AC2+16*t2+8*e; o = 16*t2+8*e
            for j in range(0, 8, 2): pk(a, "v_pk_fma_f32", XF+o+j, [b+j, G+o+j, XF+o+j])
            for d in range(4): a(f"v_cvt_pk_bf16_f32 v{TT+8*t2+4*e+d}, v{XF+o+2*d}, v{XF+o+2*d+1}")
        a("s_andn2_b64 exec, -1, s[74:75]")
        for e in range(2): a(f"buffer_store_dwordx4 {V(TT+8*t2+4*e)}, v{vXo}, {S(SC)}, {'0' if t2==0 else 's68'} offen offset:{64*e} {OUTM}")
        a(f"s_cmp_eq_u32 s74, 0\ns_cbranch_scc1 L_ns{t2}\ns_mov_b64 exec, s[74:75]")
        for e in range(2):
            for q in range(2): a(f"ds_write_b128 v6, {V(AC2+16*t2+8*e+4*q)} offset:{128*e+16*q}")
        a(f"L_ns{t2}:\ns_mov_b64 exec, -1")
    a(f"s_cmp_eq_u32 s{sOWN}, 0\ns_cbranch_scc1 L_g1end\ns_waitcnt lgkmcnt(0)\ns_barrier\nL_g1end:")
    dump(a, 0)

def build(kname, launch):
    a = Asm()
    head = open('/code/%s.s.ref' % NAME).read().split('\n')
    hdr = [l for l in head if l.startswith(';') and '@launch' not in l and 'Override launch' not in l and 'grid=ceil' not in l]
    out = '\n'.join(hdr) + '\n' + launch + '\n.amdgcn_target "amdgcn-amd-amdhsa--gfx950"\n.text\n'
    kernel(a, kname)
    out += a.text()
    out += ".p2align 8\nL_code_end:\n.fill 2048, 4, 0xbf800000\n"
    out += '.section .rodata,"a"\n.p2align 6\n' + kernel_desc(kname, 256, 102)
    return out

if __name__ == "__main__":
    if len(sys.argv) > 1:
        txt = build("fused_kernel", f"; @launch kernel=fused_kernel grid=(256,1,1) block=(512,1,1) lds={LDS_BYTES}"); path = sys.argv[1]
    else:
        txt = build(NAME+"_kernel", f"; @launch grid=(256,1,1) block=(512,1,1) lds={LDS_BYTES}"); path = f"/code/{NAME}.s"
    open(path, "w").write(txt)
    print("wrote", path, len(txt))
```
